```python
import torch

def _softmax(x, axis=-1):
    return torch.softmax(x, dim=axis)
def _gelu(x):
    return torch.nn.functional.gelu(x, approximate="tanh")
def _silu(x):
    return torch.nn.functional.silu(x)
def _sigmoid(x):
    return torch.sigmoid(x)
def _layernorm(x, axis=-1, eps=1e-5):
    m = x.mean(dim=axis, keepdim=True)
    v = x.var(dim=axis, keepdim=True, unbiased=False)
    return (x - m) / torch.sqrt(v + eps)
def _scatter_add(tgt, idx, src, axis=0):
    return tgt.clone().index_add_(axis, idx, src)
def _segment_sum(src, seg, n):
    out = torch.zeros((n,) + src.shape[1:], dtype=src.dtype)
    return out.index_add_(0, seg, src)
def _pad(x, pw):
    flat = tuple(v for pair in reversed(pw) for v in pair)
    return torch.nn.functional.pad(x, flat)

kernel_name = 'sequential_preLN__sliding_block_cached__dense_activation_relu__decode'

def setup_inputs():

    _w = (lambda a: (lambda t: t.to(torch.bfloat16) if t.is_floating_point() else t)(torch.as_tensor(a)))
    def _A_setup():
        B, Sq, D = 1, 1, 576
        Hq, Hkv, Sk, Dh = 32, 16, 65536, 128
        assert Hq % Hkv == 0, (Hq, Hkv)
        return {
            "x": _w((lambda *s: torch.randn(*s, dtype=torch.bfloat16) * 0.05)(B, Sq, D)),
            "k_cache": _w((lambda *s: torch.randn(*s, dtype=torch.bfloat16) * 3.2)(B, Hkv, Sk, Dh)),
            "v_cache": _w((lambda *s: torch.randn(*s, dtype=torch.bfloat16) * 0.4)(B, Hkv, Sk, Dh)),
            "wq": _w((lambda *s: torch.randn(*s, dtype=torch.bfloat16) * 3.2)(D, Hq * Dh) * (D ** -0.5)),
            "wo": _w((lambda *s: torch.randn(*s, dtype=torch.bfloat16) * 0.4)(Hq * Dh, D) * ((Hq * Dh) ** -0.5)),
        }
    _A_in = _A_setup()

    def _B_setup():
        B, S, D, Dff = 1, 1, 576, 4608
        return {
            "x": _w((lambda *s: torch.randn(*s, dtype=torch.bfloat16) * 0.05)(B, S, D)),
            "w1": _w((lambda *s: torch.randn(*s, dtype=torch.bfloat16) * 0.05)(D, Dff)),
            "w2": _w((lambda *s: torch.randn(*s, dtype=torch.bfloat16) * 0.05)(Dff, D)),
        }
    _B_in = _B_setup()

    return {
        "A_x": _A_in["x"],
        "A_k_cache": _A_in["k_cache"],
        "A_v_cache": _A_in["v_cache"],
        "A_wq": _A_in["wq"],
        "A_wo": _A_in["wo"],
        "B_x": _B_in["x"],
        "B_w1": _B_in["w1"],
        "B_w2": _B_in["w2"],
    }

def reference(A_x, A_k_cache, A_v_cache, A_wq, A_wo, B_x, B_w1, B_w2):
    def _A_ref(x, k_cache, v_cache, wq, wo):
        B, Sq, D = x.shape
        Hq, Dh = 32, 128
        Hkv, Sk = k_cache.shape[1], k_cache.shape[2]
        W = min(4096, max(256, Sk // 4))
        rep = Hq // Hkv
        q = (lambda x, *d: x.permute(*d))((x @ wq).reshape(B, Sq, Hq, Dh), 0, 2, 1, 3)
        k = (lambda x, n, axis: torch.repeat_interleave(x, n, dim=axis))(k_cache[:, :, Sk - W:, :], rep, axis=1)
        v = (lambda x, n, axis: torch.repeat_interleave(x, n, dim=axis))(v_cache[:, :, Sk - W:, :], rep, axis=1)
        scores = torch.einsum("bhqd,bhkd->bhqk", q, k) * (Dh ** -0.5)
        p = _softmax(scores, axis=-1)
        o = torch.einsum("bhqk,bhkd->bhqd", p, v)
        return (lambda x, *d: x.permute(*d))(o, 0, 2, 1, 3).reshape(B, Sq, Hq * Dh) @ wo

    def _B_ref(x, w1, w2):
        h = torch.einsum("bsd,df->bsf", x, w1)
        zero = torch.zeros_like(h)
        h = torch.maximum(h, zero)
        return torch.einsum("bsf,fd->bsd", h, w2)

    x = A_x
    h = x + _A_ref(_layernorm(x, axis=-1), A_k_cache, A_v_cache, A_wq, A_wo)
    h2 = h + _B_ref(_layernorm(h, axis=-1), B_w1, B_w2)
    return h2
```

```python
import re
REG = re.compile(r'^(-|abs\()?([vsa])(\d+)\)?$'); RNG = re.compile(r'^([vsa])\[(\d+):(\d+)\]$')
def regs(op):
    op = op.strip()
    if op == 'vcc': return {('s', 106), ('s', 107)}
    if op == 'exec': return {('s', 126), ('s', 127)}
    m = REG.match(op)
    if m: return {(m.group(2), int(m.group(3)))}
    m = RNG.match(op)
    if m: return {(m.group(1), i) for i in range(int(m.group(2)), int(m.group(3)) + 1)}
    return set()
TRANS = ('v_exp_f32', 'v_log_f32', 'v_rcp_f32', 'v_rsq_f32', 'v_sqrt_f32')
class I:
    def __init__(s, line):
        s.line = line; t = line.split(';')[0].strip(); s.t = t
        s.label = t.endswith(':'); s.dir = t.startswith('.') or not t
        if s.label or s.dir: s.mn = ''; return
        p = t.split(None, 1); s.mn = mn = p[0]
        ops = [o.strip() for o in re.split(r',(?![^\[]*\])', p[1])] if len(p) > 1 else []
        if ops: ops[-1] = ops[-1].split()[0] if ops[-1].split() else ''
        s.ops = ops
        s.valu = mn.startswith('v_'); s.mfma = mn.startswith('v_mfma'); s.dpp = '_dpp' in mn
        s.vmem = mn.startswith(('buffer_', 'global_')); s.ds = mn.startswith('ds_')
        s.trans = mn in TRANS; s.dot = mn.startswith('v_dot'); s.perml = mn.startswith('v_permlane')
        s.rdl = mn.startswith(('v_readlane', 'v_readfirstlane'))
        R = [regs(o) for o in ops]
        s.dst = set(); s.src = set(); s.srcC = set(); s.stdata = set()
        if s.valu:
            s.dst = set(R[0]); s.src = set().union(*R[1:]) if len(R) > 1 else set()
            if s.perml: s.dst |= R[1]; s.src |= R[0]
            if mn.startswith(('v_dot2c', 'v_fmac')) or s.dpp: s.src |= R[0]
            if mn.startswith('v_cndmask') and len(ops) == 3: s.src |= regs('vcc')
            if s.mfma: s.srcC = R[3]; s.srcAB = R[1] | R[2]
        elif s.vmem:
            if 'load' in mn: s.dst = set(R[0]); s.src = set().union(*R[1:])
            else:
                s.src = set().union(*R)
                if 'x4' in mn or 'x3' in mn: s.stdata = R[0] if mn.startswith('buffer') else R[1]
        elif s.ds:
            if 'read' in mn or 'permute' in mn or 'swizzle' in mn: s.dst = set(R[0]); s.src = set().union(*R[1:])
            else: s.src = set().union(*R)
        s.slots = int(ops[0]) + 1 if mn == 's_nop' else 1
def need(p, c):
    n = 0
    v = lambda S: {x for x in S if x[0] != 's'}
    sg = lambda S: {x for x in S if x[0] == 's'}
    if p.mfma:
        if c.mfma:
            if p.dst & c.srcAB: n = max(n, 8)
            if p.dst & c.srcC and p.dst != c.srcC: n = max(n, 6)
            if p.dst & c.dst and p.dst != c.srcC: n = max(n, 8)
        elif (c.valu or c.vmem or c.ds) and p.dst & (c.src | c.dst): n = max(n, 8)
        if c.valu and not c.mfma and p.srcC & c.dst: n = max(n, 3)
    elif p.valu:
        if v(p.dst) & c.src:
            if c.mfma or c.dpp or c.perml: n = max(n, 2)
            if c.rdl: n = max(n, 1)
            if p.trans and c.valu: n = max(n, 1)
        if p.dot and c.valu and (v(p.dst) & (c.src | c.dst)) and not (c.mn == p.mn and not (v(p.dst) & (regs(c.ops[1]) | regs(c.ops[2])))): n = max(n, 3)
        if p.dot and (c.vmem or c.ds) and v(p.dst) & c.src: n = max(n, 3)
        if sg(p.dst) & c.src and not c.mn.startswith('s_'):
            if c.valu: n = max(n, 4 if c.rdl else 2)
            if c.vmem: n = max(n, 5)
    if p.stdata and (c.valu or c.vmem or c.ds) and p.stdata & c.dst: n = max(n, 2)
    return n
def pad(text):
    out = []; hist = []; nins = 0
    for line in text.split('\n'):
        c = I(line)
        if c.label or c.dir: out.append(line); continue
        d = 0; k = 0
        for p in reversed(hist):
            k = max(k, need(p, c) - d); d += p.slots
            if d > 12: break
        if k > 0:
            out.append(f'    s_nop {k-1}'); hist.append(I(f's_nop {k-1}')); nins += 1
        out.append(line); hist.append(c)
    return '\n'.join(out), nins
```

```python
import sys, os
sys.path.insert(0, os.path.dirname(__file__))
from asmlib import pad
KN = "sequential_preLN__sliding_block_cached__dense_activation_relu__decode_kernel"
WS_Q, WS_A, WS_B, WS_H, WS_C = 0x10000, 0x20000, 0x80000, 0x90000, 0xA0000
L_QP, L_Q, L_S, L_OP, L_XP, L_ST, L_HN, L_H1, L_END = 0, 2560, 3072, 5120, 13312, 15616, 15872, 17408, 18560
L_ML = L_S + 1024
LOFF = 0x200000
LOG2E = "0x3fb8aa3b"
DEF = dict(stamp=0, dq=(14,), da=0, db=0, dr=30, dz=0, rs=3, maxpoll=4000, touch=1, nk0=2, ym=2, pb=0, n1=0, n2=4, loca=0, locq=0, mask=1, pf=0, nx=2, ybar=1, xo=0, pnt="nt", dend=12, w2f=0, ylate=2, bad=0, D=3, nv0=4, nt="nt", wnt="nt")

def gen(**kw):
    P = dict(DEF); P.update(kw)
    out = []; A = lambda s: out.extend("    " + x.strip() if not x.strip().endswith(":") else x.strip() for x in s.strip().split("\n"))
    nt, wnt = P["nt"], P["wnt"]
    def ST(k):
        if P["stamp"]: A(f"s_memrealtime s[{72+2*k}:{73+2*k}]")
    R = lambda b, n: f"v[{b}:{b+n-1}]"
    K, V, W, T = 32, 64, 96, 128
    lab = [0]
    def dppadd(d, s, ctrl, op="add"): A(f"v_{op}_f32_dpp v{d}, v{s}, v{d} {ctrl} row_mask:0xf bank_mask:0xf")
    def swapred(regs, tmp, which, op="add"):
        for n, r in enumerate(regs): A(f"v_mov_b32 v{tmp+n}, v{r}")
        for n, r in enumerate(regs): A(f"v_permlane{which}_swap_b32 v{tmp+n}, v{r}")
        for n, r in enumerate(regs): A(f"v_{op}_f32 v{r}, v{tmp+n}, v{r}")
    def red(regs, tmp, steps, op="add"):
        for s in steps:
            if s in (16, 32): swapred(regs, tmp, s, op)
            else:
                for r in regs: dppadd(r, r, {1: "quad_perm:[1,0,3,2]", 2: "quad_perm:[2,3,0,1]", 4: "row_ror:4", 8: "row_ror:8"}[s], op)
    def tag(b):
        for j in range(4): A(f"v_and_or_b32 v{b+j}, v{b+j}, v4, s{60+j}")
    def untag(b, n=4):
        for j in range(n): A(f"v_and_b32 v{b+j}, v4, v{b+j}")
    def poll(loads, gr, t, after=None, nafter=0):
        lab[0] += 1; n = lab[0]
        A(f"s_mov_b32 s40, {P['maxpoll']}")
        A(loads)
        if after: after()
        A(f"s_waitcnt vmcnt({nafter})")
        A(f"Lp{n}:")
        rs = [b + j for b in gr for j in range(4)]
        for r in rs: A(f"v_xor_b32 v{r}, s{60+(r&3)}, v{r}")
        k = 0
        while len(rs) > 2:
            A(f"v_or3_b32 v{t+(k&1)}, v{rs[0]}, v{rs[1]}, v{rs[2]}"); rs = rs[3:] + [t + (k & 1)] if len(rs) > 5 and k == 0 else ([t + (k & 1)] + rs[3:-1] + rs[-1:] if len(rs) > 3 else [t + (k & 1)])
            k = 1 if k == 0 and len(gr) > 1 else k
        if len(rs) == 2: A(f"v_or_b32 v{t}, v{rs[0]}, v{rs[1]}"); rs = [t]
        A(f"v_and_b32 v{t}, 0xff, v{rs[0]}\nv_cmp_ne_u32 vcc, 0, v{t}")
        A(f"s_cbranch_vccz Lq{n}\ns_sub_u32 s40, s40, 1\ns_cbranch_scc1 Lq{n}\ns_sleep {P['rs']}\ns_mov_b64 exec, vcc")
        A(loads); A(f"s_waitcnt vmcnt(0)\ns_branch Lp{n}\nLq{n}:\ns_mov_b64 exec, -1")
    def perms(dst, src, nld, w):
        for c in range(2 * w):
            for p in range(nld // 2):
                A(f"v_perm_b32 v{dst+c*(nld//2)+p}, v{src+(2*p+1)*w+(c>>1)}, v{src+2*p*w+(c>>1)}, s{65+(c&1)}")
    def wloads(dst, srd, voff, sbase, stride, es):
        for e in es:
            A(f"s_add_u32 s41, s{sbase}, {e*stride}\nbuffer_load_dwordx2 {R(dst+2*e,2)}, v{voff}, s[{srd}:{srd+3}], s41 offen {wnt}")
    def wl4(dst, srd, voff, sbase, stride, es):
        for e in es:
            A(f"s_add_u32 s41, s{sbase}, {e*stride}\nbuffer_load_dwordx4 {R(dst+4*e,4)}, v{voff}, s[{srd}:{srd+3}], s41 offen {wnt}")
    def comb(D):
        for n in range(4): A(f"v_cndmask_b32 v{12+n}, v{D+16+4*n}, v{D+4*n}, s[36:37]\nv_cndmask_b32 v{20+n}, v{D+16+4*n}, v{D+4*n}, s[36:37]")
        for n in range(4): A(f"v_permlane16_swap_b32 v{20+n}, v{12+n}")
        for n in range(4): dppadd(20 + n, 12 + n, "row_ror:8")
    def lnscale(sm, sq, t):
        A(f"""v_mul_f32 v{sm}, 0x3ae38e39, v{sm}
        v_mul_f32 v{sq}, 0x3ae38e39, v{sq}
        v_fma_f32 v{sq}, -v{sm}, v{sm}, v{sq}
        v_max_f32 v{sq}, 0, v{sq}
        v_cvt_pk_bf16_f32 v{t}, v{sm}, v{sq}
        v_lshlrev_b32 v{sm}, 16, v{t}
        v_and_b32 v{sq}, 0xffff0000, v{t}
        v_add_f32 v{sq}, 0x3727c5ac, v{sq}
        v_cvt_pk_bf16_f32 v{sq}, v{sq}, v{sq}
        v_and_b32 v{sq}, 0xffff0000, v{sq}
        v_sqrt_f32 v{sq}, v{sq}
        v_cvt_pk_bf16_f32 v{sq}, v{sq}, v{sq}
        v_and_b32 v{sq}, 0xffff0000, v{sq}
        v_rcp_f32 v{sq}, v{sq}""")
    def lnorm(x, d, sm, sq):
        for j in (0, 2): A(f"v_pk_add_f32 {R(x+j,2)}, {R(x+j,2)}, {R(sm,2)} op_sel_hi:[1,0] neg_lo:[0,1] neg_hi:[0,1]")
        A(f"v_cvt_pk_bf16_f32 v{d}, v{x}, v{x+1}\nv_cvt_pk_bf16_f32 v{d+1}, v{x+2}, v{x+3}")
        unpack(x, d, 2)
        for j in (0, 2): A(f"v_pk_mul_f32 {R(x+j,2)}, {R(x+j,2)}, {R(sm,2)} op_sel:[0,1] op_sel_hi:[1,1]")
        A(f"v_cvt_pk_bf16_f32 v{d}, v{x}, v{x+1}\nv_cvt_pk_bf16_f32 v{d+1}, v{x+2}, v{x+3}")
    def unpack(d, s, n):
        for j in range(n): A(f"v_and_b32 v{d+2*j+1}, 0xffff0000, v{s+j}\nv_lshlrev_b32 v{d+2*j}, 16, v{s+j}")
    def execm(lo, hi): A(f"s_mov_b32 exec_lo, {lo}\ns_mov_b32 exec_hi, {hi}")
    def gather_pub(n, base, soff, relu=0):
        A("v_lshlrev_b32 v8, 2, v1")
        for k in range(n): A(f"ds_read_b32 v{T+k}, v8 offset:{base+k*256}")
        A("s_waitcnt lgkmcnt(0)")
        tree([T + k for k in range(n)])
        if relu: A(f"v_max_f32 v{T}, 0, v{T}\nv_cvt_pk_bf16_f32 v{T}, v{T}, v{T}")
        for j in range(1, 4): A(f"v_mov_b32_dpp v{T+j}, v{T} quad_perm:[{j},{j},{j},{j}] row_mask:0xf bank_mask:0xf")
        tag(T); execm("0x11111111", "0x11111111")
        A(f"buffer_store_dwordx4 {R(T,4)}, v8, s[28:31], {soff} offen sc1\ns_mov_b64 exec, -1")
    def tree(rs):
        while len(rs) > 1:
            nx = []
            for a in range(0, len(rs) - 1, 2): A(f"v_add_f32 v{rs[a]}, v{rs[a]}, v{rs[a+1]}"); nx.append(rs[a])
            if len(rs) & 1: nx.append(rs[-1])
            rs = nx
    def d2lds(D, vaddr):
        for c in range(4): A(f"v_mov_b32 v{20+c}, v{D+4*c}")
        execm("0xffff", "0"); A(f"ds_write_b128 v{vaddr}, v[20:23]\ns_mov_b64 exec, -1")
    BAR = "s_waitcnt lgkmcnt(0)\ns_barrier"

    ST(0)
    A("""s_cmp_ge_u32 s2, 256
    s_cbranch_scc1 Lend
    s_load_dwordx16 s[36:51], s[0:1], 0
    s_load_dwordx2 s[32:33], s[0:1], 64
    s_load_dwordx2 s[28:29], s[0:1], 80
    v_lshrrev_b32 v5, 6, v0
    v_and_b32 v1, 63, v0
    v_readfirstlane_b32 s3, v5
    v_and_b32 v2, 15, v0
    v_lshrrev_b32 v3, 4, v1
    v_mov_b32 v4, 0xffffff00
    s_and_b32 s56, s2, 7
    s_lshr_b32 s57, s2, 3
    s_and_b32 s58, s57, 1
    s_lshl1_add_u32 s58, s56, s58
    s_lshr_b32 s59, s57, 1
    s_mov_b32 s65, 0x05040100
    s_mov_b32 s66, 0x07060302
    s_mov_b32 s67, 0x0c0c0400
    s_mov_b32 s68, 0x04000c0c
    s_mov_b32 s6, 1152
    s_mov_b32 s7, 0x20000
    s_mov_b32 s10, 65536
    s_mov_b32 s11, 0x20000
    s_mov_b32 s14, 65536
    s_mov_b32 s15, 0x20000
    s_mov_b32 s18, 4718592
    s_mov_b32 s19, 0x20000
    s_mov_b32 s23, 0x20000
    s_mov_b32 s26, 5308416
    s_mov_b32 s27, 0x20000
    s_mov_b32 s30, 0x40000000
    s_mov_b32 s31, 0x20000
    s_mov_b32 s34, 1152
    s_mov_b32 s35, 0x20000
    s_lshl_b32 s52, s58, 24
    s_add_u32 s53, s59, 240
    s_lshl_b32 s53, s53, 16
    s_add_u32 s52, s52, s53
    s_lshr_b32 s53, s59, 2
    s_mul_i32 s53, s53, 9
    s_add_u32 s53, s53, s3
    s_lshl_b32 s54, s53, 17
    s_lshl_b32 s53, s53, 5
    s_lshl_b32 s55, s58, 2
    s_and_b32 s69, s59, 3
    s_add_u32 s55, s55, s69
    s_lshl_b32 s55, s55, 7
    s_add_u32 s54, s54, s55
    v_lshlrev_b32 v7, 4, v1
    v_lshlrev_b32 v24, 3, v3
    v_and_b32 v25, 3, v0
    v_lshl_add_u32 v25, v3, 2, v25
    v_lshl_add_u32 v25, v5, 4, v25
    v_lshlrev_b32 v31, 3, v25
    v_lshlrev_b32 v26, 3, v2
    v_lshl_add_u32 v27, v3, 15, v26
    v_mov_b32 v28, 0
    s_mov_b32 s69, 0
    s_cmp_lt_u32 s57, 18
    s_cselect_b32 s69, 1, s69
    s_sub_u32 s70, s57, 18
    s_cmp_lt_u32 s70, 9
    s_cselect_b32 s69, 2, s69
    s_mul_i32 s71, s56, 9
    s_add_u32 s70, s70, s71
    s_waitcnt lgkmcnt(0)
    s_mov_b64 s[4:5], s[36:37]
    s_mov_b64 s[16:17], s[42:43]
    buffer_load_dword v6, v28, s[28:31], 0 offen sc1
    buffer_load_dwordx4 v[8:11], v7, s[4:7], 0 offen
    buffer_load_dwordx4 v[12:15], v7, s[4:7], 0 offen offset:1024
    buffer_load_dwordx2 v[16:17], v24, s[4:7], s53 offen
    buffer_load_dwordx2 v[18:19], v31, s[4:7], 0 offen""")
    wloads(T, 16, 27, 54, 8192, range(4))
    A("""s_add_u32 s8, s38, s52
    s_addc_u32 s9, s39, 0
    s_add_u32 s12, s40, s52
    s_addc_u32 s13, s41x, 0
    s_mov_b64 s[24:25], s[50:51]
    s_mov_b64 s[20:21], s[48:49]
    s_mov_b32 s22, 5308416
    s_cmp_eq_u32 s69, 1
    s_cbranch_scc0 Lnx
    s_mov_b64 s[20:21], s[44:45]
    s_mov_b32 s22, 4718592
    Lnx:
    v_lshrrev_b32 v20, 3, v2
    v_lshl_add_u32 v20, v20, 2, v3
    v_and_b32 v21, 7, v2
    v_lshlrev_b32 v21, 4, v21
    v_mul_u32_u24 v29, 73728, v20
    v_add_u32 v29, v29, v21
    v_mul_u32_u24 v30, 9216, v20
    v_add_u32 v30, v30, v21
    v_mul_u32_u24 v27, 4608, v20
    v_add_u32 v27, v27, v21
    v_lshrrev_b32 v20, 1, v3
    v_lshlrev_b32 v26, 1, v21
    v_lshl_add_u32 v26, v20, 4, v26
    s_mov_b32 s36, -1
    s_mov_b32 s37, 0
    s_lshl4_add_u32 s55, s58, s59
    s_mul_i32 s51, s55, 1152
    s_add_u32 s51, s51, %d
    s_lshl_b32 s55, s55, 8
    s_add_u32 s55, s55, %d
    s_barrier
    s_cmp_eq_u32 s3, 0
    s_cbranch_scc1 Lhelp""" % (WS_A, WS_Q))
    def qphase(nx):
        A(f"s_waitcnt vmcnt({4+nx})")
        ST(1)
        A("v_mov_b32 v20, 0x3f803f80\nv_dot2_f32_bf16 v21, v8, v20, 0\nv_dot2_f32_bf16 v22, v8, v8, 0\nv_dot2_f32_bf16 v23, v12, v20, 0\nv_dot2_f32_bf16 v24, v12, v12, 0")
        for j in range(1, 4):
            A(f"v_dot2_f32_bf16 v21, v{8+j}, v20, v21\nv_dot2_f32_bf16 v22, v{8+j}, v{8+j}, v22\nv_dot2_f32_bf16 v23, v{12+j}, v20, v23\nv_dot2_f32_bf16 v24, v{12+j}, v{12+j}, v24")
        A("v_readfirstlane_b32 s64, v6\nv_add_f32 v23, v21, v23\nv_add_f32 v21, v22, v24\nv_mov_b32 v22, v23\nv_mov_b32 v23, v21")
        red([22, 23], 20, [1, 2, 4, 8, 16, 32])
        A("s_mul_i32 s64, s64, 0x9E3779B1\ns_add_u32 s64, s64, 0x7F4A7C15\ns_and_b32 s60, s64, 0xff\ns_bfe_u32 s61, s64, 0x80008\ns_bfe_u32 s62, s64, 0x80010\ns_lshr_b32 s63, s64, 24")
        lnscale(22, 23, 21)
        unpack(8, 16, 2); lnorm(8, 16, 22, 23)
        A(f"s_lshl_b32 s41, s3, 8\nv_lshl_add_u32 v24, v2, 4, s41\ns_waitcnt vmcnt({nx})")
        ST(2)
        perms(T + 8, T, 4, 2)
        for c in range(4): A(f"v_mfma_f32_16x16x16_bf16 {R(T+16+4*c,4)}, v[16:17], {R(T+8+2*c,2)}, 0")
        d2lds(T + 16, 24)
        A(BAR)
    def ysoff():
        A("""s_mul_i32 s42, s3, 589824
        s_lshl_b32 s43, s70, 7
        s_add_u32 s42, s42, s43
        s_mul_i32 s43, s70, 73728
        s_lshl_b32 s44, s3, 7
        s_add_u32 s43, s43, s44""")
    n1 = P["n1"]
    def w1a(): wl4(W, 20, 29, 42, 9216, range(n1))
    A("""s_sub_u32 s50, s3, 1
    s_lshl_b32 s41, s50, 13
    v_lshrrev_b32 v24, 2, v2
    v_lshlrev_b32 v24, 11, v24
    v_lshl_add_u32 v24, v3, 6, v24
    v_and_b32 v25, 3, v2
    v_lshl_add_u32 v24, v25, 4, v24""")
    nk0 = P["nk0"]
    A("v_mov_b32 v5, v24")
    for n in range(nk0): A(f"buffer_load_dwordx4 {R(K+4*n,4)}, v5, s[8:11], s41 offen offset:{n*256} {nt}")
    qphase(nk0)
    A("v_lshlrev_b32 v24, 11, v3\nv_lshl_add_u32 v24, v2, 4, v24")
    if P["pb"]: A("s_barrier")
    def kv(lo, hi):
        for n in range(lo, hi):
            if P["D"] and n >= P["D"] and n < P["dend"]: A(f"s_waitcnt vmcnt({P['D']-1})")
            A(f"buffer_load_dwordx4 {R(K+4*n,4)}, v{5 if n < 8 else 24}, s[{8 if n < 8 else 12}:{11 if n < 8 else 15}], s45 offen offset:{(n&7)*256} {nt}")
    nsc = 8 + P["nv0"]
    A("s_lshl_b32 s45, s50, 13")
    kv(nk0, nsc)
    A(f"""v_bfe_u32 v8, v2, 2, 1
    v_lshlrev_b32 v31, 8, v8
    v_lshl_add_u32 v31, v3, 6, v31
    v_lshl_add_u32 v31, v25, 4, v31
    s_lshl_b32 s41, s50, 7
    v_lshlrev_b32 v9, 6, v8
    v_lshl_add_u32 v9, v3, 4, v9
    v_add_u32 v9, s41, v9
    v_and_b32 v10, 1, v3
    v_lshlrev_b32 v8, 6, v10
    v_lshrrev_b32 v12, 2, v2
    v_lshl_add_u32 v11, v12, 4, v8
    v_lshrrev_b32 v12, 1, v3
    v_lshl_add_u32 v11, v12, 3, v11
    v_add_u32 v11, s41, v11
    v_lshlrev_b32 v10, 9, v10
    v_lshl_add_u32 v10, v2, 5, v10
    v_lshl_add_u32 v10, v12, 4, v10
    s_lshl_b32 s41, s50, 10
    v_add_u32 v10, s41, v10
    s_lshl_b32 s41, s50, 3
    v_add_u32 v6, s41, v8
    s_barrier
    ds_read_b128 v[20:23], v31 offset:{L_Q}
    s_waitcnt vmcnt({P['nv0']}) lgkmcnt(0)""")
    ST(4)
    for n in range(8): A(f"v_mfma_f32_16x16x32_bf16 {R(T+4*n,4)}, v[20:23], {R(K+4*n,4)}, 0")
    for j in range(1, 4):
        for n in range(8): dppadd(T + 4 * n, T + 4 * n + j, f"quad_perm:[{j},{j},{j},{j}]")
    for n in range(4): A(f"v_cndmask_b32 v{12+n}, v{T+16+4*n}, v{T+4*n}, s[36:37]")
    A("v_cvt_pk_bf16_f32 v16, v12, v13\nv_cvt_pk_bf16_f32 v17, v14, v15"); unpack(12, 16, 2)
    for n in range(4): A(f"v_mul_f32 v{12+n}, 0x3db504f3, v{12+n}")
    A("v_cvt_pk_bf16_f32 v16, v12, v13\nv_cvt_pk_bf16_f32 v17, v14, v15"); unpack(12, 16, 2)
    A("v_max3_f32 v16, v12, v13, v14\nv_max_f32 v16, v16, v15")
    red([16], 20, [4, 8, 32], "max")
    for n in range(4): A(f"v_sub_f32 v{12+n}, v{12+n}, v16")
    for n in range(4): A(f"v_mul_f32 v{12+n}, {LOG2E}, v{12+n}")
    for n in range(4): A(f"v_exp_f32 v{12+n}, v{12+n}")
    A("v_cvt_pk_bf16_f32 v20, v12, v13\nv_cvt_pk_bf16_f32 v21, v14, v15\nv_add_f32 v17, v12, v13\nv_add_f32 v14, v14, v15\nv_add_f32 v17, v17, v14")
    execm("0x11111111", "0x11111111"); A(f"ds_write_b64 v11, v[20:21] offset:{L_S}\ns_mov_b64 exec, -1\nds_read_b128 v[20:23], v9 offset:{L_S}")
    red([17], 12, [4, 8, 32])
    execm("0x00010001", "0"); A(f"ds_write_b64 v6, v[16:17] offset:{L_ML}\ns_mov_b64 exec, -1\nds_read_b32 v16, v6 offset:{L_ML}")
    kv(nsc, 16)
    ST(3)
    A(BAR)
    for k in range(4): A(f"ds_read_b128 {R(T+4*k,4)}, v8 offset:{L_ML+16*k}")
    A("s_cmp_eq_u32 s69, 1\ns_cbranch_scc1 Lax\ns_cmp_eq_u32 s69, 2\ns_cbranch_scc1 Lay")
    def max8():
        A(f"v_max3_f32 v12, v{T}, v{T+2}, v{T+4}\nv_max3_f32 v13, v{T+6}, v{T+8}, v{T+10}\nv_max3_f32 v12, v12, v{T+12}, v{T+14}\nv_max_f32 v12, v12, v13")
    def pv(nw):
        A("s_waitcnt lgkmcnt(0)")
        max8()
        A(f"v_sub_f32 v16, v16, v12\nv_mul_f32 v16, {LOG2E}, v16\nv_exp_f32 v16, v16")
        A(f"s_waitcnt vmcnt({nw})")
        ST(5)
        perms(K, V, 8, 4)
        for c in range(8): A(f"v_mfma_f32_16x16x32_bf16 {R(V+4*c,4)}, v[20:23], {R(K+4*c,4)}, 0")
        for n in range(4): A(f"v_cndmask_b32 v{12+n}, v{V+16+4*n}, v{V+4*n}, s[36:37]")
        for n in range(4): A(f"v_mul_f32 v{12+n}, v{12+n}, v16")
        A(f"ds_write_b128 v10, v[12:15] offset:{L_OP}")
        A(BAR)
    pv(0)
    A("s_branch Lfin")
    A("Lay:"); ysoff(); w1a(); pv(n1)
    if P["ylate"] == 2: A("s_barrier")
    A("s_branch Ly")
    A("""Lax:
    s_lshl_b32 s42, s58, 3
    s_add_u32 s42, s42, s50
    s_mul_i32 s42, s42, 36864
    s_lshl_b32 s43, s59, 7
    s_add_u32 s42, s42, s43""")
    nx = P["nx"]; wl4(W, 20, 27, 42, 1152, range(nx)); pv(nx)
    if nx < 4: A("s_barrier"); wl4(W, 20, 27, 42, 1152, range(nx, 4))
    ST(6)
    A(f"""s_mul_i32 s42, s58, 18432
    s_add_u32 s42, s42, {WS_A+1024}
    s_add_u32 s47, s42, 9216
    s_lshl_b32 s43, s50, 7
    s_add_u32 s43, s43, s42
    s_sub_u32 s43, s43, 1024
    s_add_u32 s48, s43, 9216
    v_lshrrev_b32 v8, 3, v1
    v_mul_u32_u24 v8, 1152, v8
    v_and_b32 v9, 7, v1
    v_lshl_add_u32 v9, v9, 4, v8
    s_lshl_b32 s41, s50, 8
    v_add_u32 v24, s41, v26""")
    def wop(n): A(f"s_waitcnt vmcnt({n})"); perms(K, W, 4, 4); ST(7)
    if not P["xo"]: wop(0)
    if P["da"]: A(f"s_sleep {P['da']}")
    ld = "\n".join(f"buffer_load_dwordx4 {R(T+4*k,4)}, v9, s[28:31], s{so} offen sc1" for k, so in enumerate((43, 48, 42, 47)))
    poll(ld, [T, T+4, T+8, T+12], 12, after=(lambda: wop(4)) if P["xo"] else None)
    ST(8)

    A(f"s_cmp_lt_u32 s50, 4\ns_cbranch_scc1 Lx0\nv_mov_b32 v{T+8}, v{T+10}\nv_mov_b32 v{T+9}, v{T+11}\nv_mov_b32 v{T+12}, v{T+14}\nv_mov_b32 v{T+13}, v{T+15}\nLx0:")
    A(f"v_max_f32 v12, v{T+8}, v{T+12}")
    red([12], 13, [8, 16, 32], "max")
    A(f"v_sub_f32 v13, v{T+12}, v12\nv_sub_f32 v12, v{T+8}, v12\nv_mul_f32 v13, {LOG2E}, v13\nv_mul_f32 v12, {LOG2E}, v12\nv_exp_f32 v13, v13\nv_exp_f32 v12, v12")
    A(f"v_mul_f32 v{T+9}, v{T+9}, v12\nv_fmac_f32 v{T+9}, v{T+13}, v13")
    for e in range(4): A(f"v_mul_f32 v{T+e}, v{T+e}, v12")
    for e in range(4): A(f"v_fmac_f32 v{T+e}, v{T+4+e}, v13")
    red([T + 9] + [T + e for e in range(4)], T + 16, [8, 16, 32])
    A(f"v_rcp_f32 v12, v{T+9}")
    for e in range(4): A(f"v_mul_f32 v{T+e}, v{T+e}, v12")
    A(f"v_cvt_pk_bf16_f32 v14, v{T}, v{T+1}\nv_cvt_pk_bf16_f32 v15, v{T+2}, v{T+3}")
    for j in range(4):
        for e in range(2): A(f"v_mov_b32_dpp v{12+e}, v{14+e} quad_perm:[{j},{j},{j},{j}] row_mask:{1<<j} bank_mask:0xf")
    for c in range(8): A(f"v_mfma_f32_16x16x16_bf16 {R(V+4*c,4)}, v[12:13], {R(K+2*c,2)}, 0")
    comb(V); execm("0xff", "0xff"); A(f"ds_write_b128 v24, v[20:23] offset:{L_XP}\ns_mov_b64 exec, -1"); A(BAR); A("s_barrier\ns_branch Lz")
    A("Lhelp:\ns_setprio 3")
    ntouch = 0
    if P["touch"]:
        ntouch = 4
        A(f"""s_mul_i32 s42, s58, 2304
        s_lshl_b32 s43, s59, 8
        s_add_u32 s42, s42, s43
        s_add_u32 s42, s42, {WS_B}
        s_add_u32 s43, s42, {WS_C-WS_B}
        s_lshl_b32 s44, s70, 8
        s_add_u32 s44, s44, {WS_H}
        s_cmp_eq_u32 s69, 2
        s_cselect_b32 s42, s44, s42
        v_lshlrev_b32 v24, 7, v1
        v_mov_b32 v25, 0x80000000
        v_cmp_gt_u32 vcc, 2, v1
        v_cndmask_b32 v20, v25, v24, vcc
        v_cmp_gt_u32 vcc, 9, v1
        v_cndmask_b32 v21, v25, v24, vcc
        buffer_load_dword v32, v20, s[28:31], s55 offen sc1
        buffer_load_dword v33, v21, s[28:31], s51 offen sc1
        buffer_load_dword v34, v20, s[28:31], s42 offen sc1
        buffer_load_dword v35, v20, s[28:31], s43 offen sc1""")
    qphase(ntouch)
    gather_pub(9, L_QP, "s55")
    ST(3)
    if P["pb"]: A("s_barrier")
    A(f"s_lshl_b32 s42, s58, 12\ns_add_u32 s42, s42, {WS_Q}\ns_sleep {P['dq'][0]}")
    poll("\n".join(f"buffer_load_dwordx4 {R(T+4*k,4)}, v7, s[28:31], s42 offen offset:{k*1024} sc1" for k in range(4)), [T + 4 * k for k in range(4)], 12)
    ST(4)
    for j in range(4): tree([T + j + 4 * k for k in range(4)])
    A(f"v_cvt_pk_bf16_f32 v12, v{T}, v{T+1}\nv_cvt_pk_bf16_f32 v13, v{T+2}, v{T+3}\nv_lshlrev_b32 v8, 3, v1\nds_write_b64 v8, v[12:13] offset:{L_Q}")
    A(BAR)
    A("v_lshrrev_b32 v8, 5, v1\nv_lshlrev_b32 v8, 6, v8\ns_barrier")
    for k in range(4): A(f"ds_read_b128 {R(T+4*k,4)}, v8 offset:{L_ML+16*k}")
    A("s_cmp_eq_u32 s69, 2\ns_cbranch_scc0 Lh1"); ysoff(); w1a(); A("Lh1:\ns_waitcnt lgkmcnt(0)")
    max8()
    for e in range(8): A(f"v_sub_f32 v{T+2*e}, v{T+2*e}, v12")
    for e in range(8): A(f"v_mul_f32 v{T+2*e}, {LOG2E}, v{T+2*e}")
    for e in range(8): A(f"v_exp_f32 v{T+2*e}, v{T+2*e}")
    for e in range(8): A(f"v_mul_f32 v{T+2*e}, v{T+2*e}, v{T+2*e+1}")
    tree([T + 2 * e for e in range(8)])
    A(f"v_mov_b32 v14, v12\nv_mov_b32 v13, v{T}\nv_mov_b32 v15, v{T}\nv_permlane32_swap_b32 v12, v14\nv_permlane32_swap_b32 v13, v15")
    tag(12)
    A("s_barrier")
    ST(6)
    for k in range(8): A(f"ds_read_b128 {R(T+4*k,4)}, v7 offset:{L_OP+k*1024}")
    execm("0xff", "0")
    A("buffer_store_dwordx4 v[12:15], v7, s[28:31], s51 offen offset:1024 sc1\ns_mov_b64 exec, -1\ns_waitcnt lgkmcnt(0)")
    for st in (16, 8, 4):
        for k in range(0, st, 2): A(f"v_pk_add_f32 {R(T+k,2)}, {R(T+k,2)}, {R(T+k+st,2)}")
    tag(T)
    A(f"buffer_store_dwordx4 {R(T,4)}, v7, s[28:31], s51 offen sc1")
    ST(7)
    if P["ylate"] == 2: A("s_cmp_eq_u32 s69, 2\ns_cbranch_scc0 Lh2\ns_barrier\nLh2:")
    A("s_cmp_eq_u32 s69, 2\ns_cbranch_scc1 Ly\ns_cmp_eq_u32 s69, 1\ns_cbranch_scc0 Lfin")
    A(f"s_mul_i32 s42, s58, 2304\ns_lshl_b32 s43, s59, 8\ns_add_u32 s42, s42, s43\ns_add_u32 s49, s42, {WS_B}\ns_barrier")
    if nx < 4: A("s_barrier")
    ST(9)
    gather_pub(8, L_XP, "s49")
    ST(10)
    A("s_barrier")
    A(f"""Lz:
    s_mul_i32 s42, s58, 9
    s_add_u32 s42, s42, s3
    s_lshl_b32 s43, s42, 7
    s_add_u32 s43, s43, {WS_H}
    s_mul_i32 s42, s42, 36864
    s_lshl_b32 s44, s59, 7
    s_add_u32 s42, s42, s44""")
    wl4(W, 24, 27, 42, 1152, range(4))
    A(f"""v_bfe_u32 v10, v2, 2, 1
    v_lshl_add_u32 v10, v10, 2, v3
    v_lshlrev_b32 v10, 4, v10
    s_lshl_b32 s41, s3, 8
    v_add_u32 v24, s41, v26
    s_waitcnt vmcnt(0)""")
    perms(K, W, 4, 4)
    ST(11)
    if P["dz"]: A(f"s_sleep {P['dz']}")
    poll(f"buffer_load_dwordx4 {R(T,4)}, v10, s[28:31], s43 offen sc1", [T], 12)
    ST(12)
    A(f"v_perm_b32 v12, v{T+1}, v{T}, s66\nv_perm_b32 v13, v{T+3}, v{T+2}, s66")
    for c in range(8): A(f"v_mfma_f32_16x16x16_bf16 {R(V+4*c,4)}, v[12:13], {R(K+2*c,2)}, 0")
    comb(V); execm("0xff", "0xff"); A(f"ds_write_b128 v24, v[20:23] offset:{L_QP}\ns_mov_b64 exec, -1"); A(BAR)
    A(f"s_cmp_eq_u32 s3, 0\ns_cbranch_scc0 Lfin\ns_add_u32 s49, s49, {WS_C-WS_B}")
    gather_pub(9, L_QP, "s49")
    ST(5)
    A("s_branch Lfin")
    A("Ly:")
    wl4(W, 20, 29, 42, 9216, range(n1, 8))
    A(f"""v_lshrrev_b32 v8, 2, v2
    v_mul_u32_u24 v8, 9216, v8
    v_and_b32 v9, 3, v2
    v_lshl_add_u32 v9, v3, 2, v9
    s_lshl_b32 s41, s3, 7
    v_lshl_add_u32 v9, v9, 3, s41
    v_lshl_add_u32 v8, v9, 1, v8
    v_add_u32 v11, 4608, v8
    v_bfe_u32 v10, v2, 2, 1
    v_lshl_add_u32 v10, v10, 2, v3
    v_lshl_add_u32 v10, v10, 4, s41
    s_lshl_b32 s41, s3, 8
    v_add_u32 v24, s41, v26
    s_lshl_b32 s41, s3, 3
    v_mov_b32 v25, s41
    v_mov_b32 v16, 0x3f803f80
    v_mov_b32 v17, 0x3f803f80
    s_mov_b32 s42, {WS_B}
    s_lshl_b32 s43, s70, 8
    s_add_u32 s43, s43, {WS_H}""")
    unpack(V, 18, 2)
    A("s_waitcnt vmcnt(0)")
    ST(8)
    perms(K, W, 8, 4)
    if P["db"]: A(f"s_sleep {P['db']}")
    def bread():
        poll("\n".join(f"buffer_load_dwordx4 {R(T+4*k,4)}, v{8 if k < 2 else 11}, s[28:31], s42 offen offset:{(k&1)*2304} sc1" for k in range(4)), [T + 4 * k for k in range(4)], 12)
        ST(9 if lab[0] < 5 else 11)
        for st in (8, 4):
            for k in range(0, st, 2): A(f"v_pk_add_f32 {R(T+k,2)}, {R(T+k,2)}, {R(T+k+st,2)}")
        red([T + j for j in range(4)], 0, [4, 8])
        A(f"v_cvt_pk_bf16_f32 v12, v{T}, v{T+1}\nv_cvt_pk_bf16_f32 v13, v{T+2}, v{T+3}")
        unpack(T, 12, 2)
        for j in (0, 2): A(f"v_pk_add_f32 {R(T+j,2)}, {R(T+j,2)}, {R(V+j,2)}")
        A(f"v_cvt_pk_bf16_f32 v12, v{T}, v{T+1}\nv_cvt_pk_bf16_f32 v13, v{T+2}, v{T+3}")
    bread()
    A(f"v_mfma_f32_16x16x16_bf16 {R(T+8,4)}, v[12:13], v[12:13], 0\nv_mfma_f32_16x16x16_bf16 {R(T+4,4)}, v[12:13], v[16:17], 0")
    unpack(V, 12, 2)
    for j in range(4): A(f"v_mov_b32 v{T+j}, v{V+j}")
    for j in range(1, 4): dppadd(T + 8, T + 8 + j, f"quad_perm:[{j},{j},{j},{j}]")
    A(f"v_pk_add_f32 {R(T+4,2)}, {R(T+4,2)}, {R(T+6,2)}\nv_add_f32 v22, v{T+4}, v{T+5}\nv_mov_b32 v23, v{T+8}")
    execm("1", "0"); A(f"ds_write_b64 v25, v[22:23] offset:{L_ST}\ns_mov_b64 exec, -1")
    A(BAR)
    for k in range(4): A(f"ds_read_b128 {R(T+8+4*k,4)}, v28 offset:{L_ST+16*k}")
    A(f"ds_read_b64 v[22:23], v28 offset:{L_ST+64}\ns_waitcnt lgkmcnt(0)")
    for st in (8, 4, 2):
        for k in range(0, st, 2): A(f"v_pk_add_f32 {R(T+8+k,2)}, {R(T+8+k,2)}, {R(T+8+k+st,2)}")
    A(f"v_pk_add_f32 v[22:23], v[22:23], {R(T+8,2)}")
    lnscale(22, 23, 21); lnorm(T, 12, 22, 23)
    A(f"ds_write_b64 v9, v[12:13] offset:{L_HN}\nds_read_b128 v[12:15], v10 offset:{L_HN}\ns_waitcnt lgkmcnt(0)")
    for c in range(8): A(f"v_mfma_f32_16x16x32_bf16 {R(T+4*c,4)}, v[12:15], {R(K+4*c,4)}, 0")
    comb(T); execm("0xff", "0xff"); A(f"ds_write_b128 v24, v[20:23] offset:{L_XP}\ns_mov_b64 exec, -1"); A(BAR)
    ST(10)
    A("s_cmp_eq_u32 s3, 0\ns_cbranch_scc0 Ly2\nv_mov_b32 v14, v8")
    gather_pub(9, L_XP, "s43", relu=1)
    ST(12)
    A(f"v_mov_b32 v8, v14\nLy2:\ns_lshl_b32 s41, s3, 3\ns_cmp_eq_u32 s41, s70\ns_cbranch_scc0 Lfin\ns_mov_b32 s42, {WS_C}\ns_sleep {P['dr']}")
    bread()
    execm("0x000f000f", "0x000f000f"); A("buffer_store_dwordx2 v[12:13], v9, s[32:35], 0 offen")
    ST(5)
    A("s_cmp_eq_u32 s3, 0\ns_cbranch_scc0 Lfin\nv_mov_b32 v12, s64"); execm("1", "0")
    A("buffer_store_dword v12, v28, s[28:31], 0 offen sc1")
    A("Lfin:\ns_waitcnt vmcnt(0)")
    if P["stamp"]:
        A("s_mov_b64 exec, -1\ns_waitcnt vmcnt(0)"); ST(13)
        A("s_lshl4_add_u32 s41, s2, s3\ns_lshl_b32 s41, s41, 7\ns_add_u32 s41, s41, 0x10000000\nv_lshlrev_b32 v8, 2, v1\nv_mov_b32 v9, 0\ns_waitcnt lgkmcnt(0)")
        for k in range(14): A(f"v_writelane_b32 v9, s{72+2*k}, {k}")
        execm("0xffff", "0"); A("buffer_store_dword v9, v8, s[28:31], s41 offen")
    A("Lend:")
    body = "\n".join(out)
    body = body.replace("s_mov_b64 s[4:5], s[36:37]", "s_mov_b64 s[4:5], s[36:37]\n    s_mov_b32 s13, s41").replace("s41x", "s13")
    if P["stamp"]: body = "\n".join(f"    s_mov_b32 s{72+2*k}, 0" for k in range(1, 14)) + "\n" + body
    body, n = pad(body)
    ref = open("cdna_kernels/" + KN[:-7] + ".s.ref").read()
    head = ref[:ref.index(KN + ":") + len(KN) + 1].replace("grid=(3,1,1) block=(256,1,1) lds=0", f"grid=(256,1,1) block=(576,1,1) lds={L_END}")
    tail = ref[ref.index("s_endpgm"):].replace("next_free_vgpr 256", "next_free_vgpr 160").replace("accum_offset 256", "accum_offset 160")
    return head + "\n" + body + "\n" + tail

if __name__ == "__main__":
    kw = {}
    for a in sys.argv[2:]:
        k, v = a.split("="); kw[k] = eval(v)
    open(sys.argv[1], "w").write(gen(**kw))
```

```python
import sys, os
sys.path.insert(0, os.path.dirname(__file__))
from asmlib import pad
KN = "sequential_preLN__sliding_block_cached__dense_activation_relu__decode_kernel"
WS_Q, WS_A, WS_B, WS_H, WS_C = 0x10000, 0x20000, 0x80000, 0x90000, 0xA0000
L_QP, L_Q, L_S, L_OP, L_XP, L_ST, L_HN, L_H1, L_END = 0, 2560, 3072, 5120, 13312, 15616, 15872, 17408, 18560
L_ML = L_S + 1024
LOFF = 0x200000
LOG2E = "0x3fb8aa3b"
DEF = dict(stamp=0, dq=(14,), da=0, db=0, dr=20, dz=0, dbgt=0, rs=3, maxpoll=4000, touch=1, nk0=2, ym=2, pb=0, n1=2, n2=4, loca=0, locq=0, mask=1, pf=0, nx=2, ybar=1, xo=0, pnt="nt", dend=12, w2f=0, ylate=2, bad=0, D=3, nv0=4, nt="nt", wnt="nt")

def gen(**kw):
    P = dict(DEF); P.update(kw)
    out = []; A = lambda s: out.extend("    " + x.strip() if not x.strip().endswith(":") else x.strip() for x in s.strip().split("\n"))
    nt, wnt = P["nt"], P["wnt"]
    def ST(k):
        if P["stamp"]: A(f"s_memrealtime s[{72+2*k}:{73+2*k}]")
    R = lambda b, n: f"v[{b}:{b+n-1}]"
    K, V, W, T = 32, 64, 96, 128
    lab = [0]
    def dppadd(d, s, ctrl, op="add"): A(f"v_{op}_f32_dpp v{d}, v{s}, v{d} {ctrl} row_mask:0xf bank_mask:0xf")
    def swapred(regs, tmp, which, op="add"):
        for n, r in enumerate(regs): A(f"v_mov_b32 v{tmp+n}, v{r}")
        for n, r in enumerate(regs): A(f"v_permlane{which}_swap_b32 v{tmp+n}, v{r}")
        for n, r in enumerate(regs): A(f"v_{op}_f32 v{r}, v{tmp+n}, v{r}")
    def red(regs, tmp, steps, op="add"):
        for s in steps:
            if s in (16, 32): swapred(regs, tmp, s, op)
            else:
                for r in regs: dppadd(r, r, {1: "quad_perm:[1,0,3,2]", 2: "quad_perm:[2,3,0,1]", 4: "row_ror:4", 8: "row_ror:8"}[s], op)
    def tag(b):
        for j in range(4): A(f"v_and_or_b32 v{b+j}, v{b+j}, v4, s{60+j}")
    def untag(b, n=4):
        for j in range(n): A(f"v_and_b32 v{b+j}, v4, v{b+j}")
    def poll(loads, gr, t, after=None, nafter=0):
        lab[0] += 1; n = lab[0]
        A(f"s_mov_b32 s40, {P['maxpoll']}")
        A(loads)
        if after: after()
        A(f"s_waitcnt vmcnt({nafter})")
        A(f"Lp{n}:")
        rs = [b + j for b in gr for j in range(4)]
        for r in rs: A(f"v_xor_b32 v{r}, s{60+(r&3)}, v{r}")
        k = 0
        while len(rs) > 2:
            A(f"v_or3_b32 v{t+(k&1)}, v{rs[0]}, v{rs[1]}, v{rs[2]}"); rs = rs[3:] + [t + (k & 1)] if len(rs) > 5 and k == 0 else ([t + (k & 1)] + rs[3:-1] + rs[-1:] if len(rs) > 3 else [t + (k & 1)])
            k = 1 if k == 0 and len(gr) > 1 else k
        if len(rs) == 2: A(f"v_or_b32 v{t}, v{rs[0]}, v{rs[1]}"); rs = [t]
        A(f"v_and_b32 v{t}, 0xff, v{rs[0]}\nv_cmp_ne_u32 vcc, 0, v{t}")
        A(f"s_cbranch_vccz Lq{n}\ns_sub_u32 s40, s40, 1\ns_cbranch_scc1 Lq{n}\ns_sleep {P['rs']}\ns_mov_b64 exec, vcc")
        A(loads); A(f"s_waitcnt vmcnt(0)\ns_branch Lp{n}\nLq{n}:\ns_mov_b64 exec, -1")
    def perms(dst, src, nld, w):
        for c in range(2 * w):
            for p in range(nld // 2):
                A(f"v_perm_b32 v{dst+c*(nld//2)+p}, v{src+(2*p+1)*w+(c>>1)}, v{src+2*p*w+(c>>1)}, s{65+(c&1)}")
    def wloads(dst, srd, voff, sbase, stride, es):
        for e in es:
            A(f"s_add_u32 s41, s{sbase}, {e*stride}\nbuffer_load_dwordx2 {R(dst+2*e,2)}, v{voff}, s[{srd}:{srd+3}], s41 offen {wnt}")
    def wl4(dst, srd, voff, sbase, stride, es):
        for e in es:
            A(f"s_add_u32 s41, s{sbase}, {e*stride}\nbuffer_load_dwordx4 {R(dst+4*e,4)}, v{voff}, s[{srd}:{srd+3}], s41 offen {wnt}")
    def comb(D):
        for n in range(4): A(f"v_cndmask_b32 v{12+n}, v{D+16+4*n}, v{D+4*n}, s[36:37]\nv_cndmask_b32 v{20+n}, v{D+16+4*n}, v{D+4*n}, s[36:37]")
        for n in range(4): A(f"v_permlane16_swap_b32 v{20+n}, v{12+n}")
        for n in range(4): dppadd(20 + n, 12 + n, "row_ror:8")
    def lnscale(sm, sq, t):
        A(f"""v_mul_f32 v{sm}, 0x3ae38e39, v{sm}
        v_mul_f32 v{sq}, 0x3ae38e39, v{sq}
        v_fma_f32 v{sq}, -v{sm}, v{sm}, v{sq}
        v_max_f32 v{sq}, 0, v{sq}
        v_cvt_pk_bf16_f32 v{t}, v{sm}, v{sq}
        v_lshlrev_b32 v{sm}, 16, v{t}
        v_and_b32 v{sq}, 0xffff0000, v{t}
        v_add_f32 v{sq}, 0x3727c5ac, v{sq}
        v_cvt_pk_bf16_f32 v{sq}, v{sq}, v{sq}
        v_and_b32 v{sq}, 0xffff0000, v{sq}
        v_sqrt_f32 v{sq}, v{sq}
        v_cvt_pk_bf16_f32 v{sq}, v{sq}, v{sq}
        v_and_b32 v{sq}, 0xffff0000, v{sq}
        v_rcp_f32 v{sq}, v{sq}""")
    def lnorm(x, d, sm, sq):
        for j in (0, 2): A(f"v_pk_add_f32 {R(x+j,2)}, {R(x+j,2)}, {R(sm,2)} op_sel_hi:[1,0] neg_lo:[0,1] neg_hi:[0,1]")
        A(f"v_cvt_pk_bf16_f32 v{d}, v{x}, v{x+1}\nv_cvt_pk_bf16_f32 v{d+1}, v{x+2}, v{x+3}")
        unpack(x, d, 2)
        for j in (0, 2): A(f"v_pk_mul_f32 {R(x+j,2)}, {R(x+j,2)}, {R(sm,2)} op_sel:[0,1] op_sel_hi:[1,1]")
        A(f"v_cvt_pk_bf16_f32 v{d}, v{x}, v{x+1}\nv_cvt_pk_bf16_f32 v{d+1}, v{x+2}, v{x+3}")
    def unpack(d, s, n):
        for j in range(n): A(f"v_and_b32 v{d+2*j+1}, 0xffff0000, v{s+j}\nv_lshlrev_b32 v{d+2*j}, 16, v{s+j}")
    def execm(lo, hi): A(f"s_mov_b32 exec_lo, {lo}\ns_mov_b32 exec_hi, {hi}")
    def gather_pub(n, base, soff, relu=0):
        A("v_lshlrev_b32 v8, 2, v1")
        for k in range(n): A(f"ds_read_b32 v{T+k}, v8 offset:{base+k*256}")
        A("s_waitcnt lgkmcnt(0)")
        tree([T + k for k in range(n)])
        if relu: A(f"v_max_f32 v{T}, 0, v{T}\nv_cvt_pk_bf16_f32 v{T}, v{T}, v{T}")
        for j in range(1, 4): A(f"v_mov_b32_dpp v{T+j}, v{T} quad_perm:[{j},{j},{j},{j}] row_mask:0xf bank_mask:0xf")
        tag(T); execm("0x11111111", "0x11111111")
        A(f"buffer_store_dwordx4 {R(T,4)}, v8, s[28:31], {soff} offen sc1\ns_mov_b64 exec, -1")
    def tree(rs):
        while len(rs) > 1:
            nx = []
            for a in range(0, len(rs) - 1, 2): A(f"v_add_f32 v{rs[a]}, v{rs[a]}, v{rs[a+1]}"); nx.append(rs[a])
            if len(rs) & 1: nx.append(rs[-1])
            rs = nx
    def d2lds(D, vaddr):
        for c in range(4): A(f"v_mov_b32 v{20+c}, v{D+4*c}")
        execm("0xffff", "0"); A(f"ds_write_b128 v{vaddr}, v[20:23]\ns_mov_b64 exec, -1")
    BAR = "s_waitcnt lgkmcnt(0)\ns_barrier"

    ST(0)
    if P["dbgt"]: A("s_memrealtime s[72:73]")
    A("""s_cmp_ge_u32 s2, 256
    s_cbranch_scc1 Lend
    s_load_dwordx16 s[36:51], s[0:1], 0
    s_load_dwordx2 s[32:33], s[0:1], 64
    s_load_dwordx2 s[28:29], s[0:1], 80
    v_lshrrev_b32 v5, 6, v0
    v_and_b32 v1, 63, v0
    v_readfirstlane_b32 s3, v5
    v_and_b32 v2, 15, v0
    v_lshrrev_b32 v3, 4, v1
    v_mov_b32 v4, 0xffffff00
    s_and_b32 s56, s2, 7
    s_lshr_b32 s57, s2, 3
    s_and_b32 s58, s57, 1
    s_lshl1_add_u32 s58, s56, s58
    s_lshr_b32 s59, s57, 1
    s_mov_b32 s65, 0x05040100
    s_mov_b32 s66, 0x07060302
    s_mov_b32 s67, 0x0c0c0400
    s_mov_b32 s68, 0x04000c0c
    s_mov_b32 s6, 1152
    s_mov_b32 s7, 0x20000
    s_mov_b32 s10, 65536
    s_mov_b32 s11, 0x20000
    s_mov_b32 s14, 65536
    s_mov_b32 s15, 0x20000
    s_mov_b32 s18, 4718592
    s_mov_b32 s19, 0x20000
    s_mov_b32 s23, 0x20000
    s_mov_b32 s26, 5308416
    s_mov_b32 s27, 0x20000
    s_mov_b32 s30, 0x40000000
    s_mov_b32 s31, 0x20000
    s_mov_b32 s34, 1152
    s_mov_b32 s35, 0x20000
    s_lshl_b32 s52, s58, 24
    s_add_u32 s53, s59, 240
    s_lshl_b32 s53, s53, 16
    s_add_u32 s52, s52, s53
    s_lshr_b32 s53, s59, 2
    s_mul_i32 s53, s53, 9
    s_add_u32 s53, s53, s3
    s_lshl_b32 s54, s53, 17
    s_lshl_b32 s53, s53, 5
    s_lshl_b32 s55, s58, 2
    s_and_b32 s69, s59, 3
    s_add_u32 s55, s55, s69
    s_lshl_b32 s55, s55, 7
    s_add_u32 s54, s54, s55
    v_lshlrev_b32 v7, 4, v1
    v_lshlrev_b32 v24, 3, v3
    v_and_b32 v25, 3, v0
    v_lshl_add_u32 v25, v3, 2, v25
    v_lshl_add_u32 v25, v5, 4, v25
    v_lshlrev_b32 v31, 3, v25
    v_lshlrev_b32 v26, 3, v2
    v_lshl_add_u32 v27, v3, 15, v26
    v_mov_b32 v28, 0
    s_mov_b32 s69, 0
    s_cmp_lt_u32 s57, 18
    s_cselect_b32 s69, 1, s69
    s_sub_u32 s70, s57, 18
    s_cmp_lt_u32 s70, 9
    s_cselect_b32 s69, 2, s69
    s_mul_i32 s71, s56, 9
    s_add_u32 s70, s70, s71
    s_waitcnt lgkmcnt(0)
    s_mov_b64 s[4:5], s[36:37]
    s_mov_b64 s[16:17], s[42:43]
    buffer_load_dword v6, v28, s[28:31], 0 offen sc1
    buffer_load_dwordx4 v[8:11], v7, s[4:7], 0 offen
    buffer_load_dwordx4 v[12:15], v7, s[4:7], 0 offen offset:1024
    buffer_load_dwordx2 v[16:17], v24, s[4:7], s53 offen
    buffer_load_dwordx2 v[18:19], v31, s[4:7], 0 offen""")
    wloads(T, 16, 27, 54, 8192, range(4))
    A("""s_add_u32 s8, s38, s52
    s_addc_u32 s9, s39, 0
    s_add_u32 s12, s40, s52
    s_addc_u32 s13, s41x, 0
    s_mov_b64 s[24:25], s[50:51]
    s_mov_b64 s[20:21], s[48:49]
    s_mov_b32 s22, 5308416
    s_cmp_eq_u32 s69, 1
    s_cbranch_scc0 Lnx
    s_mov_b64 s[20:21], s[44:45]
    s_mov_b32 s22, 4718592
    Lnx:
    v_lshrrev_b32 v20, 3, v2
    v_lshl_add_u32 v20, v20, 2, v3
    v_and_b32 v21, 7, v2
    v_lshlrev_b32 v21, 4, v21
    v_mul_u32_u24 v29, 73728, v20
    v_add_u32 v29, v29, v21
    v_mul_u32_u24 v30, 9216, v20
    v_add_u32 v30, v30, v21
    v_mul_u32_u24 v27, 4608, v20
    v_add_u32 v27, v27, v21
    v_lshrrev_b32 v20, 1, v3
    v_lshlrev_b32 v26, 1, v21
    v_lshl_add_u32 v26, v20, 4, v26
    s_mov_b32 s36, -1
    s_mov_b32 s37, 0
    s_lshl4_add_u32 s55, s58, s59
    s_mul_i32 s51, s55, 1152
    s_add_u32 s51, s51, %d
    s_lshl_b32 s55, s55, 8
    s_add_u32 s55, s55, %d
    s_barrier
    s_cmp_eq_u32 s3, 0
    s_cbranch_scc1 Lhelp""" % (WS_A, WS_Q))
    def qphase(nx):
        A(f"s_waitcnt vmcnt({4+nx})")
        ST(1)
        A("v_mov_b32 v20, 0x3f803f80\nv_dot2_f32_bf16 v21, v8, v20, 0\nv_dot2_f32_bf16 v22, v8, v8, 0\nv_dot2_f32_bf16 v23, v12, v20, 0\nv_dot2_f32_bf16 v24, v12, v12, 0")
        for j in range(1, 4):
            A(f"v_dot2_f32_bf16 v21, v{8+j}, v20, v21\nv_dot2_f32_bf16 v22, v{8+j}, v{8+j}, v22\nv_dot2_f32_bf16 v23, v{12+j}, v20, v23\nv_dot2_f32_bf16 v24, v{12+j}, v{12+j}, v24")
        A("v_readfirstlane_b32 s64, v6\nv_add_f32 v23, v21, v23\nv_add_f32 v21, v22, v24\nv_mov_b32 v22, v23\nv_mov_b32 v23, v21")
        red([22, 23], 20, [1, 2, 4, 8, 16, 32])
        A("s_mul_i32 s64, s64, 0x9E3779B1\ns_add_u32 s64, s64, 0x7F4A7C15\ns_and_b32 s60, s64, 0xff\ns_bfe_u32 s61, s64, 0x80008\ns_bfe_u32 s62, s64, 0x80010\ns_lshr_b32 s63, s64, 24")
        lnscale(22, 23, 21)
        unpack(8, 16, 2); lnorm(8, 16, 22, 23)
        A(f"s_lshl_b32 s41, s3, 8\nv_lshl_add_u32 v24, v2, 4, s41\ns_waitcnt vmcnt({nx})")
        ST(2)
        perms(T + 8, T, 4, 2)
        for c in range(4): A(f"v_mfma_f32_16x16x16_bf16 {R(T+16+4*c,4)}, v[16:17], {R(T+8+2*c,2)}, 0")
        d2lds(T + 16, 24)
        A(BAR)
    def ysoff():
        A("""s_mul_i32 s42, s3, 589824
        s_lshl_b32 s43, s70, 7
        s_add_u32 s42, s42, s43
        s_mul_i32 s43, s70, 73728
        s_lshl_b32 s44, s3, 7
        s_add_u32 s43, s43, s44""")
    n1 = P["n1"]
    def w1a(): wl4(W, 20, 29, 42, 9216, range(n1))
    A("""s_sub_u32 s50, s3, 1
    s_lshl_b32 s41, s50, 13
    v_lshrrev_b32 v24, 2, v2
    v_lshlrev_b32 v24, 11, v24
    v_lshl_add_u32 v24, v3, 6, v24
    v_and_b32 v25, 3, v2
    v_lshl_add_u32 v24, v25, 4, v24""")
    nk0 = P["nk0"]
    A("v_mov_b32 v5, v24")
    for n in range(nk0): A(f"buffer_load_dwordx4 {R(K+4*n,4)}, v5, s[8:11], s41 offen offset:{n*256} {nt}")
    qphase(nk0)
    A("v_lshlrev_b32 v24, 11, v3\nv_lshl_add_u32 v24, v2, 4, v24")
    if P["pb"]: A("s_barrier")
    def kv(lo, hi):
        for n in range(lo, hi):
            if P["D"] and n >= P["D"] and n < P["dend"]: A(f"s_waitcnt vmcnt({P['D']-1})")
            A(f"buffer_load_dwordx4 {R(K+4*n,4)}, v{5 if n < 8 else 24}, s[{8 if n < 8 else 12}:{11 if n < 8 else 15}], s45 offen offset:{(n&7)*256} {nt}")
    nsc = 8 + P["nv0"]
    A("s_lshl_b32 s45, s50, 13")
    kv(nk0, nsc)
    A(f"""v_bfe_u32 v8, v2, 2, 1
    v_lshlrev_b32 v31, 8, v8
    v_lshl_add_u32 v31, v3, 6, v31
    v_lshl_add_u32 v31, v25, 4, v31
    s_lshl_b32 s41, s50, 7
    v_lshlrev_b32 v9, 6, v8
    v_lshl_add_u32 v9, v3, 4, v9
    v_add_u32 v9, s41, v9
    v_and_b32 v10, 1, v3
    v_lshlrev_b32 v8, 6, v10
    v_lshrrev_b32 v12, 2, v2
    v_lshl_add_u32 v11, v12, 4, v8
    v_lshrrev_b32 v12, 1, v3
    v_lshl_add_u32 v11, v12, 3, v11
    v_add_u32 v11, s41, v11
    v_lshlrev_b32 v10, 9, v10
    v_lshl_add_u32 v10, v2, 5, v10
    v_lshl_add_u32 v10, v12, 4, v10
    s_lshl_b32 s41, s50, 10
    v_add_u32 v10, s41, v10
    s_lshl_b32 s41, s50, 3
    v_add_u32 v6, s41, v8
    s_barrier
    ds_read_b128 v[20:23], v31 offset:{L_Q}
    s_waitcnt vmcnt({P['nv0']}) lgkmcnt(0)""")
    ST(4)
    for n in range(8): A(f"v_mfma_f32_16x16x32_bf16 {R(T+4*n,4)}, v[20:23], {R(K+4*n,4)}, 0")
    for j in range(1, 4):
        for n in range(8): dppadd(T + 4 * n, T + 4 * n + j, f"quad_perm:[{j},{j},{j},{j}]")
    for n in range(4): A(f"v_cndmask_b32 v{12+n}, v{T+16+4*n}, v{T+4*n}, s[36:37]")
    A("v_cvt_pk_bf16_f32 v16, v12, v13\nv_cvt_pk_bf16_f32 v17, v14, v15"); unpack(12, 16, 2)
    for n in range(4): A(f"v_mul_f32 v{12+n}, 0x3db504f3, v{12+n}")
    A("v_cvt_pk_bf16_f32 v16, v12, v13\nv_cvt_pk_bf16_f32 v17, v14, v15"); unpack(12, 16, 2)
    A("v_max3_f32 v16, v12, v13, v14\nv_max_f32 v16, v16, v15")
    red([16], 20, [4, 8, 32], "max")
    for n in range(4): A(f"v_sub_f32 v{12+n}, v{12+n}, v16")
    for n in range(4): A(f"v_mul_f32 v{12+n}, {LOG2E}, v{12+n}")
    for n in range(4): A(f"v_exp_f32 v{12+n}, v{12+n}")
    A("v_cvt_pk_bf16_f32 v20, v12, v13\nv_cvt_pk_bf16_f32 v21, v14, v15\nv_add_f32 v17, v12, v13\nv_add_f32 v14, v14, v15\nv_add_f32 v17, v17, v14")
    execm("0x11111111", "0x11111111"); A(f"ds_write_b64 v11, v[20:21] offset:{L_S}\ns_mov_b64 exec, -1\nds_read_b128 v[20:23], v9 offset:{L_S}")
    red([17], 12, [4, 8, 32])
    execm("0x00010001", "0"); A(f"ds_write_b64 v6, v[16:17] offset:{L_ML}\ns_mov_b64 exec, -1\nds_read_b32 v16, v6 offset:{L_ML}")
    kv(nsc, 16)
    ST(3)
    A(BAR)
    for k in range(4): A(f"ds_read_b128 {R(T+4*k,4)}, v8 offset:{L_ML+16*k}")
    A("s_cmp_eq_u32 s69, 1\ns_cbranch_scc1 Lax\ns_cmp_eq_u32 s69, 2\ns_cbranch_scc1 Lay")
    def max8():
        A(f"v_max3_f32 v12, v{T}, v{T+2}, v{T+4}\nv_max3_f32 v13, v{T+6}, v{T+8}, v{T+10}\nv_max3_f32 v12, v12, v{T+12}, v{T+14}\nv_max_f32 v12, v12, v13")
    def pv(nw):
        A("s_waitcnt lgkmcnt(0)")
        max8()
        A(f"v_sub_f32 v16, v16, v12\nv_mul_f32 v16, {LOG2E}, v16\nv_exp_f32 v16, v16")
        A(f"s_waitcnt vmcnt({nw})")
        ST(5)
        perms(K, V, 8, 4)
        for c in range(8): A(f"v_mfma_f32_16x16x32_bf16 {R(V+4*c,4)}, v[20:23], {R(K+4*c,4)}, 0")
        for n in range(4): A(f"v_cndmask_b32 v{12+n}, v{V+16+4*n}, v{V+4*n}, s[36:37]")
        for n in range(4): A(f"v_mul_f32 v{12+n}, v{12+n}, v16")
        A(f"ds_write_b128 v10, v[12:15] offset:{L_OP}")
        A(BAR)
    pv(0)
    A("s_branch Lfin")
    A("Lay:"); ysoff(); w1a(); pv(n1)
    if P["ylate"] == 2: A("s_barrier")
    A("s_branch Ly")
    A("""Lax:
    s_lshl_b32 s42, s58, 3
    s_add_u32 s42, s42, s50
    s_mul_i32 s42, s42, 36864
    s_lshl_b32 s43, s59, 7
    s_add_u32 s42, s42, s43""")
    nx = P["nx"]; wl4(W, 20, 27, 42, 1152, range(nx)); pv(nx)
    if nx < 4: A("s_barrier"); wl4(W, 20, 27, 42, 1152, range(nx, 4))
    ST(6)
    A(f"""s_mul_i32 s42, s58, 18432
    s_add_u32 s42, s42, {WS_A+1024}
    s_add_u32 s47, s42, 9216
    s_lshl_b32 s43, s50, 7
    s_add_u32 s43, s43, s42
    s_sub_u32 s43, s43, 1024
    s_add_u32 s48, s43, 9216
    v_lshrrev_b32 v8, 3, v1
    v_mul_u32_u24 v8, 1152, v8
    v_and_b32 v9, 7, v1
    v_lshl_add_u32 v9, v9, 4, v8
    s_lshl_b32 s41, s50, 8
    v_add_u32 v24, s41, v26""")
    def wop(n): A(f"s_waitcnt vmcnt({n})"); perms(K, W, 4, 4); ST(7)
    if not P["xo"]: wop(0)
    if P["da"]: A(f"s_sleep {P['da']}")
    ld = "\n".join(f"buffer_load_dwordx4 {R(T+4*k,4)}, v9, s[28:31], s{so} offen sc1" for k, so in enumerate((43, 48, 42, 47)))
    poll(ld, [T, T+4, T+8, T+12], 12, after=(lambda: wop(4)) if P["xo"] else None)
    ST(8)

    A(f"s_cmp_lt_u32 s50, 4\ns_cbranch_scc1 Lx0\nv_mov_b32 v{T+8}, v{T+10}\nv_mov_b32 v{T+9}, v{T+11}\nv_mov_b32 v{T+12}, v{T+14}\nv_mov_b32 v{T+13}, v{T+15}\nLx0:")
    A(f"v_max_f32 v12, v{T+8}, v{T+12}")
    red([12], 13, [8, 16, 32], "max")
    A(f"v_sub_f32 v13, v{T+12}, v12\nv_sub_f32 v12, v{T+8}, v12\nv_mul_f32 v13, {LOG2E}, v13\nv_mul_f32 v12, {LOG2E}, v12\nv_exp_f32 v13, v13\nv_exp_f32 v12, v12")
    A(f"v_mul_f32 v{T+9}, v{T+9}, v12\nv_fmac_f32 v{T+9}, v{T+13}, v13")
    for e in range(4): A(f"v_mul_f32 v{T+e}, v{T+e}, v12")
    for e in range(4): A(f"v_fmac_f32 v{T+e}, v{T+4+e}, v13")
    red([T + 9] + [T + e for e in range(4)], T + 16, [8, 16, 32])
    A(f"v_rcp_f32 v12, v{T+9}")
    for e in range(4): A(f"v_mul_f32 v{T+e}, v{T+e}, v12")
    A(f"v_cvt_pk_bf16_f32 v14, v{T}, v{T+1}\nv_cvt_pk_bf16_f32 v15, v{T+2}, v{T+3}")
    for j in range(4):
        for e in range(2): A(f"v_mov_b32_dpp v{12+e}, v{14+e} quad_perm:[{j},{j},{j},{j}] row_mask:{1<<j} bank_mask:0xf")
    for c in range(8): A(f"v_mfma_f32_16x16x16_bf16 {R(V+4*c,4)}, v[12:13], {R(K+2*c,2)}, 0")
    comb(V); execm("0xff", "0xff"); A(f"ds_write_b128 v24, v[20:23] offset:{L_XP}\ns_mov_b64 exec, -1"); A(BAR); A("s_barrier\ns_branch Lz")
    A("Lhelp:\ns_setprio 3")
    ntouch = 0
    if P["touch"]:
        ntouch = 4
        A(f"""s_mul_i32 s42, s58, 2304
        s_lshl_b32 s43, s59, 8
        s_add_u32 s42, s42, s43
        s_add_u32 s42, s42, {WS_B}
        s_add_u32 s43, s42, {WS_C-WS_B}
        s_lshl_b32 s44, s70, 8
        s_add_u32 s44, s44, {WS_H}
        s_cmp_eq_u32 s69, 2
        s_cselect_b32 s42, s44, s42
        v_lshlrev_b32 v24, 7, v1
        v_mov_b32 v25, 0x80000000
        v_cmp_gt_u32 vcc, 2, v1
        v_cndmask_b32 v20, v25, v24, vcc
        v_cmp_gt_u32 vcc, 9, v1
        v_cndmask_b32 v21, v25, v24, vcc
        buffer_load_dword v32, v20, s[28:31], s55 offen sc1
        buffer_load_dword v33, v21, s[28:31], s51 offen sc1
        buffer_load_dword v34, v20, s[28:31], s42 offen sc1
        buffer_load_dword v35, v20, s[28:31], s43 offen sc1""")
    qphase(ntouch)
    gather_pub(9, L_QP, "s55")
    ST(3)
    if P["pb"]: A("s_barrier")
    A(f"s_lshl_b32 s42, s58, 12\ns_add_u32 s42, s42, {WS_Q}\ns_sleep {P['dq'][0]}")
    poll("\n".join(f"buffer_load_dwordx4 {R(T+4*k,4)}, v7, s[28:31], s42 offen offset:{k*1024} sc1" for k in range(4)), [T + 4 * k for k in range(4)], 12)
    ST(4)
    for j in range(4): tree([T + j + 4 * k for k in range(4)])
    A(f"v_cvt_pk_bf16_f32 v12, v{T}, v{T+1}\nv_cvt_pk_bf16_f32 v13, v{T+2}, v{T+3}\nv_lshlrev_b32 v8, 3, v1\nds_write_b64 v8, v[12:13] offset:{L_Q}")
    A(BAR)
    A("v_lshrrev_b32 v8, 5, v1\nv_lshlrev_b32 v8, 6, v8\ns_barrier")
    for k in range(4): A(f"ds_read_b128 {R(T+4*k,4)}, v8 offset:{L_ML+16*k}")
    A("s_cmp_eq_u32 s69, 2\ns_cbranch_scc0 Lh1"); ysoff(); w1a(); A("Lh1:\ns_waitcnt lgkmcnt(0)")
    max8()
    for e in range(8): A(f"v_sub_f32 v{T+2*e}, v{T+2*e}, v12")
    for e in range(8): A(f"v_mul_f32 v{T+2*e}, {LOG2E}, v{T+2*e}")
    for e in range(8): A(f"v_exp_f32 v{T+2*e}, v{T+2*e}")
    for e in range(8): A(f"v_mul_f32 v{T+2*e}, v{T+2*e}, v{T+2*e+1}")
    tree([T + 2 * e for e in range(8)])
    A(f"v_mov_b32 v14, v12\nv_mov_b32 v13, v{T}\nv_mov_b32 v15, v{T}\nv_permlane32_swap_b32 v12, v14\nv_permlane32_swap_b32 v13, v15")
    tag(12)
    A("s_barrier")
    ST(6)
    for k in range(8): A(f"ds_read_b128 {R(T+4*k,4)}, v7 offset:{L_OP+k*1024}")
    execm("0xff", "0")
    A("buffer_store_dwordx4 v[12:15], v7, s[28:31], s51 offen offset:1024 sc1\ns_mov_b64 exec, -1\ns_waitcnt lgkmcnt(0)")
    for st in (16, 8, 4):
        for k in range(0, st, 2): A(f"v_pk_add_f32 {R(T+k,2)}, {R(T+k,2)}, {R(T+k+st,2)}")
    tag(T)
    A(f"buffer_store_dwordx4 {R(T,4)}, v7, s[28:31], s51 offen sc1")
    ST(7)
    if P["ylate"] == 2: A("s_cmp_eq_u32 s69, 2\ns_cbranch_scc0 Lh2\ns_barrier\nLh2:")
    A("s_cmp_eq_u32 s69, 2\ns_cbranch_scc1 Ly\ns_cmp_eq_u32 s69, 1\ns_cbranch_scc0 Lfin")
    A(f"s_mul_i32 s42, s58, 2304\ns_lshl_b32 s43, s59, 8\ns_add_u32 s42, s42, s43\ns_add_u32 s49, s42, {WS_B}\ns_barrier")
    if nx < 4: A("s_barrier")
    ST(9)
    gather_pub(8, L_XP, "s49")
    ST(10)
    A("s_barrier")
    A(f"""Lz:
    s_mul_i32 s42, s58, 9
    s_add_u32 s42, s42, s3
    s_lshl_b32 s43, s42, 7
    s_add_u32 s43, s43, {WS_H}
    s_mul_i32 s42, s42, 36864
    s_lshl_b32 s44, s59, 7
    s_add_u32 s42, s42, s44""")
    wl4(W, 24, 27, 42, 1152, range(4))
    A(f"""v_bfe_u32 v10, v2, 2, 1
    v_lshl_add_u32 v10, v10, 2, v3
    v_lshlrev_b32 v10, 4, v10
    s_lshl_b32 s41, s3, 8
    v_add_u32 v24, s41, v26
    s_waitcnt vmcnt(0)""")
    perms(K, W, 4, 4)
    ST(11)
    if P["dz"]: A(f"s_sleep {P['dz']}")
    poll(f"buffer_load_dwordx4 {R(T,4)}, v10, s[28:31], s43 offen sc1", [T], 12)
    ST(12)
    A(f"v_perm_b32 v12, v{T+1}, v{T}, s66\nv_perm_b32 v13, v{T+3}, v{T+2}, s66")
    for c in range(8): A(f"v_mfma_f32_16x16x16_bf16 {R(V+4*c,4)}, v[12:13], {R(K+2*c,2)}, 0")
    comb(V); execm("0xff", "0xff"); A(f"ds_write_b128 v24, v[20:23] offset:{L_QP}\ns_mov_b64 exec, -1"); A(BAR)
    A(f"s_cmp_eq_u32 s3, 0\ns_cbranch_scc0 Lfin\ns_add_u32 s49, s49, {WS_C-WS_B}")
    gather_pub(9, L_QP, "s49")
    ST(5)
    A("s_branch Lfin")
    A("Ly:")
    wl4(W, 20, 29, 42, 9216, range(n1, 8))
    A(f"""v_lshrrev_b32 v8, 2, v2
    v_mul_u32_u24 v8, 9216, v8
    v_and_b32 v9, 3, v2
    v_lshl_add_u32 v9, v3, 2, v9
    s_lshl_b32 s41, s3, 7
    v_lshl_add_u32 v9, v9, 3, s41
    v_lshl_add_u32 v8, v9, 1, v8
    v_add_u32 v11, 4608, v8
    v_bfe_u32 v10, v2, 2, 1
    v_lshl_add_u32 v10, v10, 2, v3
    v_lshl_add_u32 v10, v10, 4, s41
    s_lshl_b32 s41, s3, 8
    v_add_u32 v24, s41, v26
    s_lshl_b32 s41, s3, 3
    v_mov_b32 v25, s41
    v_mov_b32 v16, 0x3f803f80
    v_mov_b32 v17, 0x3f803f80
    s_mov_b32 s42, {WS_B}
    s_lshl_b32 s43, s70, 8
    s_add_u32 s43, s43, {WS_H}""")
    unpack(V, 18, 2)
    A("s_waitcnt vmcnt(0)")
    ST(8)
    perms(K, W, 8, 4)
    if P["db"]: A(f"s_sleep {P['db']}")
    def bread():
        poll("\n".join(f"buffer_load_dwordx4 {R(T+4*k,4)}, v{8 if k < 2 else 11}, s[28:31], s42 offen offset:{(k&1)*2304} sc1" for k in range(4)), [T + 4 * k for k in range(4)], 12)
        ST(9 if lab[0] < 5 else 11)
        for st in (8, 4):
            for k in range(0, st, 2): A(f"v_pk_add_f32 {R(T+k,2)}, {R(T+k,2)}, {R(T+k+st,2)}")
        red([T + j for j in range(4)], 0, [4, 8])
        A(f"v_cvt_pk_bf16_f32 v12, v{T}, v{T+1}\nv_cvt_pk_bf16_f32 v13, v{T+2}, v{T+3}")
        unpack(T, 12, 2)
        for j in (0, 2): A(f"v_pk_add_f32 {R(T+j,2)}, {R(T+j,2)}, {R(V+j,2)}")
        A(f"v_cvt_pk_bf16_f32 v12, v{T}, v{T+1}\nv_cvt_pk_bf16_f32 v13, v{T+2}, v{T+3}")
    bread()
    A(f"v_mfma_f32_16x16x16_bf16 {R(T+8,4)}, v[12:13], v[12:13], 0\nv_mfma_f32_16x16x16_bf16 {R(T+4,4)}, v[12:13], v[16:17], 0")
    unpack(V, 12, 2)
    for j in range(4): A(f"v_mov_b32 v{T+j}, v{V+j}")
    for j in range(1, 4): dppadd(T + 8, T + 8 + j, f"quad_perm:[{j},{j},{j},{j}]")
    A(f"v_pk_add_f32 {R(T+4,2)}, {R(T+4,2)}, {R(T+6,2)}\nv_add_f32 v22, v{T+4}, v{T+5}\nv_mov_b32 v23, v{T+8}")
    execm("1", "0"); A(f"ds_write_b64 v25, v[22:23] offset:{L_ST}\ns_mov_b64 exec, -1")
    A(BAR)
    for k in range(4): A(f"ds_read_b128 {R(T+8+4*k,4)}, v28 offset:{L_ST+16*k}")
    A(f"ds_read_b64 v[22:23], v28 offset:{L_ST+64}\ns_waitcnt lgkmcnt(0)")
    for st in (8, 4, 2):
        for k in range(0, st, 2): A(f"v_pk_add_f32 {R(T+8+k,2)}, {R(T+8+k,2)}, {R(T+8+k+st,2)}")
    A(f"v_pk_add_f32 v[22:23], v[22:23], {R(T+8,2)}")
    lnscale(22, 23, 21); lnorm(T, 12, 22, 23)
    A(f"ds_write_b64 v9, v[12:13] offset:{L_HN}\nds_read_b128 v[12:15], v10 offset:{L_HN}\ns_waitcnt lgkmcnt(0)")
    for c in range(8): A(f"v_mfma_f32_16x16x32_bf16 {R(T+4*c,4)}, v[12:15], {R(K+4*c,4)}, 0")
    comb(T); execm("0xff", "0xff"); A(f"ds_write_b128 v24, v[20:23] offset:{L_XP}\ns_mov_b64 exec, -1"); A(BAR)
    ST(10)
    A("s_cmp_eq_u32 s3, 0\ns_cbranch_scc0 Ly2\nv_mov_b32 v14, v8")
    gather_pub(9, L_XP, "s43", relu=1)
    ST(12)
    A(f"v_mov_b32 v8, v14\nLy2:\ns_lshl_b32 s41, s3, 3\ns_cmp_eq_u32 s41, s70\ns_cbranch_scc0 Lfin\ns_mov_b32 s42, {WS_C}\ns_sleep {P['dr']}")
    bread()
    execm("0x000f000f", "0x000f000f"); A("buffer_store_dwordx2 v[12:13], v9, s[32:35], 0 offen")
    ST(5)
    if P["dbgt"]:
        A("""s_load_dwordx2 s[44:45], s[0:1], 72
        s_memrealtime s[74:75]
        s_mov_b32 s46, 256
        s_mov_b32 s47, 0x20000
        s_waitcnt lgkmcnt(0)
        s_sub_u32 s74, s74, s72
        v_mov_b32 v14, s74
        s_lshl_b32 s41, s3, 2
        buffer_store_dword v14, v28, s[44:47], s41 offen""")
    A("s_cmp_eq_u32 s3, 0\ns_cbranch_scc0 Lfin\nv_mov_b32 v12, s64"); execm("1", "0")
    A("buffer_store_dword v12, v28, s[28:31], 0 offen sc1")
    A("Lfin:\ns_waitcnt vmcnt(0)")
    if P["stamp"]:
        A("s_mov_b64 exec, -1\ns_waitcnt vmcnt(0)"); ST(13)
        A("s_lshl4_add_u32 s41, s2, s3\ns_lshl_b32 s41, s41, 7\ns_add_u32 s41, s41, 0x10000000\nv_lshlrev_b32 v8, 2, v1\nv_mov_b32 v9, 0\ns_waitcnt lgkmcnt(0)")
        for k in range(14): A(f"v_writelane_b32 v9, s{72+2*k}, {k}")
        execm("0xffff", "0"); A("buffer_store_dword v9, v8, s[28:31], s41 offen")
    A("Lend:")
    body = "\n".join(out)
    body = body.replace("s_mov_b64 s[4:5], s[36:37]", "s_mov_b64 s[4:5], s[36:37]\n    s_mov_b32 s13, s41").replace("s41x", "s13")
    if P["stamp"]: body = "\n".join(f"    s_mov_b32 s{72+2*k}, 0" for k in range(1, 14)) + "\n" + body
    body, n = pad(body)
    ref = open("cdna_kernels/" + KN[:-7] + ".s.ref").read()
    head = ref[:ref.index(KN + ":") + len(KN) + 1].replace("grid=(3,1,1) block=(256,1,1) lds=0", f"grid=(256,1,1) block=(576,1,1) lds={L_END}")
    tail = ref[ref.index("s_endpgm"):].replace("next_free_vgpr 256", "next_free_vgpr 160").replace("accum_offset 256", "accum_offset 160")
    return head + "\n" + body + "\n" + tail

if __name__ == "__main__":
    kw = {}
    for a in sys.argv[2:]:
        k, v = a.split("="); kw[k] = eval(v)
    open(sys.argv[1], "w").write(gen(**kw))
```

```python
import sys, os
sys.path.insert(0, os.path.dirname(__file__))
from asmlib import pad
KN = "sequential_preLN__sliding_block_cached__dense_activation_relu__decode_kernel"
WS_Q, WS_A, WS_B, WS_H, WS_C = 0x10000, 0x20000, 0x200000, 0x90000, 0x400000
L_QP, L_Q, L_S, L_OP, L_XP, L_ST, L_HN, L_H1, L_END = 0, 2560, 3072, 5120, 13312, 15616, 15872, 17408, 18560
L_ML = L_S + 1024
LOFF = 0x200000
LOG2E = "0x3fb8aa3b"
DEF = dict(stamp=0, dq=(14,), da=22, db=0, dr=28, dz=0, dbgt=0, bth=6, b0=1, BS=256, bl2=0, al2=0, bcol=4, nph=3, npc=3, pp=4, dw=16, dsw=16, D2=4, rs=1, maxpoll=4000, touch=1, nk0=2, ym=2, pb=0, n1=2, n2=4, loca=0, locq=0, mask=1, pf=0, nx=1, ybar=1, xo=1, pnt="nt", dend=13, w2f=0, ylate=2, bad=0, D=3, nv0=8, nt="nt", wnt="nt")

def gen(**kw):
    P = dict(DEF); P.update(kw)
    out = []; A = lambda s: out.extend("    " + x.strip() if not x.strip().endswith(":") else x.strip() for x in s.strip().split("\n"))
    BS = P["BS"]
    nt, wnt = P["nt"], P["wnt"]
    def ST(k):
        if P["stamp"]: A(f"s_memrealtime s[{72+2*k}:{73+2*k}]")
    R = lambda b, n: f"v[{b}:{b+n-1}]"
    K, V, W, T = 32, 64, 96, 128
    lab = [0]
    def dppadd(d, s, ctrl, op="add"): A(f"v_{op}_f32_dpp v{d}, v{s}, v{d} {ctrl} row_mask:0xf bank_mask:0xf")
    def swapred(regs, tmp, which, op="add"):
        for n, r in enumerate(regs): A(f"v_mov_b32 v{tmp+n}, v{r}")
        for n, r in enumerate(regs): A(f"v_permlane{which}_swap_b32 v{tmp+n}, v{r}")
        for n, r in enumerate(regs): A(f"v_{op}_f32 v{r}, v{tmp+n}, v{r}")
    def red(regs, tmp, steps, op="add"):
        for s in steps:
            if s in (16, 32): swapred(regs, tmp, s, op)
            else:
                for r in regs: dppadd(r, r, {1: "quad_perm:[1,0,3,2]", 2: "quad_perm:[2,3,0,1]", 4: "row_ror:4", 8: "row_ror:8"}[s], op)
    def tag(b):
        for j in range(4): A(f"v_and_or_b32 v{b+j}, v{b+j}, v4, s{60+j}")
    def untag(b, n=4):
        for j in range(n): A(f"v_and_b32 v{b+j}, v4, v{b+j}")
    def check(gr, t, dst="vcc"):
        rs = [b + j for b in gr for j in range(4)]
        for r in rs: A(f"v_xor_b32 v{r}, s{60+(r&3)}, v{r}")
        acc = []
        for k, part in enumerate((rs[:len(rs)//2], rs[len(rs)//2:]) if len(rs) > 4 else (rs,)):
            A(f"v_or3_b32 v{t+k}, v{part[0]}, v{part[1]}, v{part[2]}"); part = part[3:]
            while len(part) > 1: A(f"v_or3_b32 v{t+k}, v{t+k}, v{part[0]}, v{part[1]}"); part = part[2:]
            acc += part
        if len(rs) > 4: A(f"v_or3_b32 v{t}, v{t}, v{acc[0]}, v{acc[1]}\nv_or_b32 v{t}, v{t}, v{t+1}")
        else: A(f"v_or_b32 v{t}, v{t}, v{acc[0]}")
        A(f"v_cmp_ne_u32_sdwa {dst}, v{t}, v28 src0_sel:BYTE_0 src1_sel:DWORD")
    def ppoll(ld, sets, ng, fin):
        lab[0] += 1; n = lab[0]; m = len(sets)
        A(f"s_mov_b32 s40, {P['maxpoll']}")
        for k, b in enumerate(sets):
            if k: A(f"s_sleep {P['pp']}")
            ld(b)
        A(f"Lp{n}:")
        for k, b in enumerate(sets):
            A(f"s_waitcnt vmcnt({ng*(m-1)})"); check([b + 4 * j for j in range(ng)], 12)
            A(f"s_cbranch_vccz Lq{n}_{k}"); ld(b)
        A(f"s_sub_u32 s40, s40, 1\ns_cbranch_scc0 Lp{n}")
        for k, b in enumerate(sets):
            A(f"Lq{n}_{k}:"); fin(b)
            if k < m - 1: A(f"s_branch Lq{n}")
        A(f"Lq{n}:")
    def mpoll(groups, after=None):
        lab[0] += 1; n = lab[0]; M = lambda k: f"s[{4+2*k}:{5+2*k}]"
        A(f"s_mov_b32 s40, {P['maxpoll']}")
        for ld, gr in groups: A(ld)
        if after: after()
        left = sum(len(gr) for ld, gr in groups)
        for k, (ld, gr) in enumerate(groups):
            left -= len(gr); A(f"s_waitcnt vmcnt({left})"); check(gr, 12 + 2 * (k & 1), M(k))
        A(f"Lp{n}:\ns_or_b64 vcc, {M(0)}, {M(1)}")
        for k in range(2, len(groups)): A(f"s_or_b64 vcc, vcc, {M(k)}")
        A(f"s_cbranch_scc0 Lq{n}\ns_sub_u32 s40, s40, 1\ns_cbranch_scc1 Lq{n}")
        if P["rs"]: A(f"s_sleep {P['rs']}")
        for k, (ld, gr) in enumerate(groups):
            A(f"s_mov_b64 exec, {M(k)}\ns_cbranch_execz Lm{n}_{k}"); A(ld); A(f"Lm{n}_{k}:")
        A("s_waitcnt vmcnt(0)")
        for k, (ld, gr) in enumerate(groups):
            A(f"s_mov_b64 exec, {M(k)}\ns_cbranch_execz Ln{n}_{k}"); check(gr, 12 + 2 * (k & 1), M(k)); A(f"Ln{n}_{k}:")
        A(f"s_mov_b64 exec, -1\ns_branch Lp{n}\nLq{n}:")
    def poll(loads, gr, t, after=None, nafter=0, first=0):
        lab[0] += 1; n = lab[0]
        A(f"s_mov_b32 s40, {P['maxpoll']}")
        A(loads.replace(" sc1", "") if first else loads)
        if after: after()
        A(f"s_waitcnt vmcnt({nafter})")
        A(f"Lp{n}:")
        check(gr, t)
        A(f"s_cbranch_vccz Lq{n}\ns_sub_u32 s40, s40, 1\ns_cbranch_scc1 Lq{n}\ns_sleep {P['rs']}\ns_mov_b64 exec, vcc")
        A(loads); A(f"s_waitcnt vmcnt(0)\ns_branch Lp{n}\nLq{n}:\ns_mov_b64 exec, -1")
    def perms(dst, src, nld, w):
        for c in range(2 * w):
            for p in range(nld // 2):
                A(f"v_perm_b32 v{dst+c*(nld//2)+p}, v{src+(2*p+1)*w+(c>>1)}, v{src+2*p*w+(c>>1)}, s{65+(c&1)}")
    def wloads(dst, srd, voff, sbase, stride, es):
        for e in es:
            A(f"s_add_u32 s41, s{sbase}, {e*stride}\nbuffer_load_dwordx2 {R(dst+2*e,2)}, v{voff}, s[{srd}:{srd+3}], s41 offen {wnt}")
    def wl4(dst, srd, voff, sbase, stride, es):
        for e in es:
            A(f"s_add_u32 s41, s{sbase}, {e*stride}\nbuffer_load_dwordx4 {R(dst+4*e,4)}, v{voff}, s[{srd}:{srd+3}], s41 offen {wnt}")
    def comb(D):
        for n in range(4): A(f"v_cndmask_b32 v{20+n}, v{D+16+4*n}, v{D+4*n}, s[36:37]")
        execm("0xff0000ff", "0xff0000ff"); A(f"ds_write_b128 v24, v[20:23] offset:{L_OP}\ns_mov_b64 exec, -1"); A(BAR)
    def lnscale(sm, sq, t):
        A(f"""v_mul_f32 v{sm}, 0x3ae38e39, v{sm}
        v_mul_f32 v{sq}, 0x3ae38e39, v{sq}
        v_fma_f32 v{sq}, -v{sm}, v{sm}, v{sq}
        v_max_f32 v{sq}, 0, v{sq}
        v_cvt_pk_bf16_f32 v{t}, v{sm}, v{sq}
        v_lshlrev_b32 v{sm}, 16, v{t}
        v_and_b32 v{sq}, 0xffff0000, v{t}
        v_add_f32 v{sq}, 0x3727c5ac, v{sq}
        v_cvt_pk_bf16_f32 v{sq}, v{sq}, v{sq}
        v_and_b32 v{sq}, 0xffff0000, v{sq}
        v_sqrt_f32 v{sq}, v{sq}
        v_cvt_pk_bf16_f32 v{sq}, v{sq}, v{sq}
        v_and_b32 v{sq}, 0xffff0000, v{sq}
        v_rcp_f32 v{sq}, v{sq}""")
    def lnorm(x, d, sm, sq, src=None):
        for j in (0, 2): A(f"v_pk_add_f32 {R(x+j,2)}, {R((src or x)+j,2)}, {R(sm,2)} op_sel_hi:[1,0] neg_lo:[0,1] neg_hi:[0,1]")
        A(f"v_cvt_pk_bf16_f32 v{d}, v{x}, v{x+1}\nv_cvt_pk_bf16_f32 v{d+1}, v{x+2}, v{x+3}")
        unpack(x, d, 2)
        for j in (0, 2): A(f"v_pk_mul_f32 {R(x+j,2)}, {R(x+j,2)}, {R(sm,2)} op_sel:[0,1] op_sel_hi:[1,1]")
        A(f"v_cvt_pk_bf16_f32 v{d}, v{x}, v{x+1}\nv_cvt_pk_bf16_f32 v{d+1}, v{x+2}, v{x+3}")
    def unpack(d, s, n):
        for j in range(n): A(f"v_and_b32 v{d+2*j+1}, 0xffff0000, v{s+j}\nv_lshlrev_b32 v{d+2*j}, 16, v{s+j}")
    def execm(lo, hi): A(f"s_mov_b32 exec_lo, {lo}\ns_mov_b32 exec_hi, {hi}")
    def gather_pub(n, base, soff, relu=0):
        A("v_lshlrev_b32 v8, 2, v1")
        for k in range(0, n - 1, 2): A(f"ds_read2st64_b32 {R(T+k,2)}, v8 offset0:{base//256+k} offset1:{base//256+k+1}")
        if n & 1: A(f"ds_read_b32 v{T+n-1}, v8 offset:{base+(n-1)*256}")
        A("s_waitcnt lgkmcnt(0)")
        pr = list(range(T, T + n - 1, 2))
        while len(pr) > 1:
            for a in range(0, len(pr) - 1, 2): A(f"v_pk_add_f32 {R(pr[a],2)}, {R(pr[a],2)}, {R(pr[a+1],2)}")
            pr = pr[0::2]
        A(f"v_add_f32 v{T}, v{T}, v{T+1}")
        if n & 1: A(f"v_add_f32 v{T}, v{T}, v{T+n-1}")
        if relu: A(f"v_max_f32 v{T}, 0, v{T}\nv_cvt_pk_bf16_f32 v{T}, v{T}, v{T}")
        for j in range(1, 4): A(f"v_mov_b32_dpp v{T+j}, v{T} quad_perm:[{j},{j},{j},{j}] row_mask:0xf bank_mask:0xf")
        tag(T); execm("0x11111111", "0x11111111")
        A(f"buffer_store_dwordx4 {R(T,4)}, v8, s[28:31], {soff} offen sc1\ns_mov_b64 exec, -1")
    def tree(rs):
        while len(rs) > 1:
            nx = []
            for a in range(0, len(rs) - 1, 2): A(f"v_add_f32 v{rs[a]}, v{rs[a]}, v{rs[a+1]}"); nx.append(rs[a])
            if len(rs) & 1: nx.append(rs[-1])
            rs = nx
    def d2lds(D, vaddr):
        for c in range(4): A(f"v_mov_b32 v{20+c}, v{D+4*c}")
        execm("0xffff", "0"); A(f"ds_write_b128 v{vaddr}, v[20:23]\ns_mov_b64 exec, -1")
    BAR = "s_waitcnt lgkmcnt(0)\ns_barrier"

    ST(0)
    if P["dbgt"]: A("s_memrealtime s[72:73]")
    A("""s_cmp_ge_u32 s2, 256
    s_cbranch_scc1 Lend
    s_load_dwordx16 s[36:51], s[0:1], 0
    s_load_dwordx2 s[32:33], s[0:1], 64
    s_load_dwordx2 s[28:29], s[0:1], 80
    v_lshrrev_b32 v5, 6, v0
    v_and_b32 v1, 63, v0
    v_readfirstlane_b32 s3, v5
    v_and_b32 v2, 15, v0
    v_lshrrev_b32 v3, 4, v1
    v_mov_b32 v4, 0xffffff00
    s_and_b32 s56, s2, 7
    s_lshr_b32 s57, s2, 3
    s_and_b32 s58, s57, 1
    s_lshl1_add_u32 s58, s56, s58
    s_lshr_b32 s59, s57, 1
    s_mov_b32 s65, 0x05040100
    s_mov_b32 s66, 0x07060302
    s_mov_b32 s67, 0x0c0c0400
    s_mov_b32 s68, 0x04000c0c
    s_mov_b32 s6, 1152
    s_mov_b32 s7, 0x20000
    s_mov_b32 s10, 65536
    s_mov_b32 s11, 0x20000
    s_mov_b32 s14, 65536
    s_mov_b32 s15, 0x20000
    s_mov_b32 s18, 4718592
    s_mov_b32 s19, 0x20000
    s_mov_b32 s23, 0x20000
    s_mov_b32 s26, 5308416
    s_mov_b32 s27, 0x20000
    s_mov_b32 s30, 0x40000000
    s_mov_b32 s31, 0x20000
    s_mov_b32 s34, 1152
    s_mov_b32 s35, 0x20000
    s_lshl_b32 s52, s58, 24
    s_add_u32 s53, s59, 240
    s_lshl_b32 s53, s53, 16
    s_add_u32 s52, s52, s53
    s_lshr_b32 s53, s59, 2
    s_mul_i32 s53, s53, 9
    s_add_u32 s53, s53, s3
    s_lshl_b32 s54, s53, 17
    s_lshl_b32 s53, s53, 5
    s_lshl_b32 s55, s58, 2
    s_and_b32 s69, s59, 3
    s_add_u32 s55, s55, s69
    s_lshl_b32 s55, s55, 7
    s_add_u32 s54, s54, s55
    v_lshlrev_b32 v7, 4, v1
    v_lshlrev_b32 v24, 3, v3
    v_and_b32 v25, 3, v0
    v_lshl_add_u32 v25, v3, 2, v25
    v_lshl_add_u32 v25, v5, 4, v25
    v_lshlrev_b32 v31, 3, v25
    v_lshlrev_b32 v26, 3, v2
    v_lshl_add_u32 v27, v3, 15, v26
    v_mov_b32 v28, 0
    s_mov_b32 s69, 0
    s_cmp_lt_u32 s57, 18
    s_cselect_b32 s69, 1, s69
    s_sub_u32 s70, s57, 18
    s_cmp_lt_u32 s70, 9
    s_cselect_b32 s69, 2, s69
    s_mul_i32 s71, s56, 9
    s_add_u32 s70, s70, s71
    s_waitcnt lgkmcnt(0)
    s_mov_b64 s[4:5], s[36:37]
    s_mov_b64 s[16:17], s[42:43]
    buffer_load_dword v6, v28, s[28:31], 0 offen sc1
    buffer_load_dwordx4 v[8:11], v7, s[4:7], 0 offen
    buffer_load_dwordx4 v[12:15], v7, s[4:7], 0 offen offset:1024
    buffer_load_dwordx2 v[16:17], v24, s[4:7], s53 offen
    buffer_load_dwordx2 v[18:19], v31, s[4:7], 0 offen""")
    wloads(T, 16, 27, 54, 8192, range(4))
    A("""s_add_u32 s8, s38, s52
    s_addc_u32 s9, s39, 0
    s_add_u32 s12, s40, s52
    s_addc_u32 s13, s41x, 0
    s_mov_b64 s[24:25], s[50:51]
    s_mov_b64 s[20:21], s[48:49]
    s_mov_b32 s22, 5308416
    s_cmp_eq_u32 s69, 1
    s_cbranch_scc0 Lnx
    s_mov_b64 s[20:21], s[44:45]
    s_mov_b32 s22, 4718592
    Lnx:
    v_lshrrev_b32 v20, 3, v2
    v_lshl_add_u32 v20, v20, 2, v3
    v_and_b32 v21, 7, v2
    v_lshlrev_b32 v21, 4, v21
    v_mul_u32_u24 v29, 73728, v20
    v_add_u32 v29, v29, v21
    v_mul_u32_u24 v27, 4608, v20
    v_add_u32 v27, v27, v21
    v_lshrrev_b32 v20, 1, v3
    v_lshlrev_b32 v26, 1, v21
    v_lshl_add_u32 v26, v20, 4, v26
    v_lshrrev_b32 v20, 3, v2
    v_lshl_add_u32 v26, v20, 8, v26
    v_lshl_add_u32 v20, v20, 4, v3
    v_mul_u32_u24 v30, 1152, v20
    v_add_u32 v30, v30, v21
    s_mov_b32 s36, -1
    s_mov_b32 s37, 0
    s_lshl4_add_u32 s55, s58, s59
    s_mul_i32 s51, s55, 1152
    s_add_u32 s51, s51, %d
    s_lshl_b32 s55, s55, 8
    s_add_u32 s55, s55, %d
    %s
    s_cmp_eq_u32 s3, 0
    s_cbranch_scc1 Lhelp""" % (WS_A, WS_Q, "s_barrier" if P["b0"] else "s_nop 0"))
    def qphase(nx):
        A(f"s_waitcnt vmcnt({4+nx})")
        ST(1)
        A("v_mov_b32 v20, 0x3f803f80\nv_dot2_f32_bf16 v21, v8, v20, 0\nv_dot2_f32_bf16 v22, v8, v8, 0\nv_dot2_f32_bf16 v23, v12, v20, 0\nv_dot2_f32_bf16 v24, v12, v12, 0")
        for j in range(1, 4):
            A(f"v_dot2_f32_bf16 v21, v{8+j}, v20, v21\nv_dot2_f32_bf16 v22, v{8+j}, v{8+j}, v22\nv_dot2_f32_bf16 v23, v{12+j}, v20, v23\nv_dot2_f32_bf16 v24, v{12+j}, v{12+j}, v24")
        A("v_readfirstlane_b32 s64, v6\nv_add_f32 v23, v21, v23\nv_add_f32 v21, v22, v24\nv_mov_b32 v22, v23\nv_mov_b32 v23, v21")
        red([22, 23], 20, [1, 2, 4, 8, 16, 32])
        A("s_mul_i32 s64, s64, 0x9E3779B1\ns_add_u32 s64, s64, 0x7F4A7C15\ns_and_b32 s60, s64, 0xff\ns_bfe_u32 s61, s64, 0x80008\ns_bfe_u32 s62, s64, 0x80010\ns_lshr_b32 s63, s64, 24")
        lnscale(22, 23, 21)
        unpack(8, 16, 2); lnorm(8, 16, 22, 23)
        A(f"s_lshl_b32 s41, s3, 8\nv_lshl_add_u32 v24, v2, 4, s41\ns_waitcnt vmcnt({nx})")
        ST(2)
        perms(T + 8, T, 4, 2)
        for c in range(4): A(f"v_mfma_f32_16x16x16_bf16 {R(T+16+4*c,4)}, v[16:17], {R(T+8+2*c,2)}, 0")
        d2lds(T + 16, 24)
        A(BAR)
    def ysoff():
        A("""s_mul_i32 s42, s3, 589824
        s_lshl_b32 s43, s70, 7
        s_add_u32 s42, s42, s43
        s_mul_i32 s43, s70, 73728
        s_lshl_b32 s44, s3, 7
        s_add_u32 s43, s43, s44""")
    n1 = P["n1"]
    def w1a(): wl4(W, 20, 29, 42, 9216, range(n1))
    A("""s_sub_u32 s50, s3, 1
    s_lshl_b32 s41, s50, 13
    v_lshrrev_b32 v24, 2, v2
    v_lshlrev_b32 v24, 11, v24
    v_lshl_add_u32 v24, v3, 6, v24
    v_and_b32 v25, 3, v2
    v_lshl_add_u32 v24, v25, 4, v24""")
    nk0 = P["nk0"]
    A("v_mov_b32 v5, v24")
    for n in range(nk0): A(f"buffer_load_dwordx4 {R(K+4*n,4)}, v5, s[8:11], s41 offen offset:{n*256} {nt}")
    qphase(nk0)
    A("v_lshlrev_b32 v24, 11, v3\nv_lshl_add_u32 v24, v2, 4, v24")
    if P["pb"]: A("s_barrier")
    def kv(lo, hi):
        for n in range(lo, hi):
            D = P["D"] if n < P["dsw"] else P["D2"]
            if D and n >= D and n < P["dend"]: A(f"s_waitcnt vmcnt({D-1})")
            A(f"buffer_load_dwordx4 {R(K+4*n,4)}, v{5 if n < 8 else 24}, s[{8 if n < 8 else 12}:{11 if n < 8 else 15}], s45 offen offset:{(n&7)*256} {nt}")
    nsc = 8 + P["nv0"]
    A("s_lshl_b32 s45, s50, 13")
    kv(nk0, nsc)
    A(f"""v_bfe_u32 v8, v2, 2, 1
    v_lshlrev_b32 v31, 8, v8
    v_lshl_add_u32 v31, v3, 6, v31
    v_lshl_add_u32 v31, v25, 4, v31
    s_lshl_b32 s41, s50, 7
    v_lshlrev_b32 v9, 6, v8
    v_lshl_add_u32 v9, v3, 4, v9
    v_add_u32 v9, s41, v9
    v_and_b32 v10, 1, v3
    v_lshlrev_b32 v8, 6, v10
    v_lshrrev_b32 v12, 2, v2
    v_lshl_add_u32 v11, v12, 4, v8
    v_lshrrev_b32 v12, 1, v3
    v_lshl_add_u32 v11, v12, 3, v11
    v_add_u32 v11, s41, v11
    v_lshlrev_b32 v10, 9, v10
    v_lshl_add_u32 v10, v2, 5, v10
    v_lshl_add_u32 v10, v12, 4, v10
    s_lshl_b32 s41, s50, 10
    v_add_u32 v10, s41, v10
    s_lshl_b32 s41, s50, 3
    v_add_u32 v6, s41, v8
    s_barrier
    ds_read_b128 v[20:23], v31 offset:{L_Q}
    s_waitcnt vmcnt({P['nv0']}) lgkmcnt(0)""")
    ST(4)
    for n in range(8): A(f"v_mfma_f32_16x16x32_bf16 {R(T+4*n,4)}, v[20:23], {R(K+4*n,4)}, 0")
    for j in range(1, 4):
        for n in range(8): dppadd(T + 4 * n, T + 4 * n + j, f"quad_perm:[{j},{j},{j},{j}]")
    for n in range(4): A(f"v_cndmask_b32 v{12+n}, v{T+16+4*n}, v{T+4*n}, s[36:37]")
    A("v_cvt_pk_bf16_f32 v16, v12, v13\nv_cvt_pk_bf16_f32 v17, v14, v15"); unpack(12, 16, 2)
    for n in range(4): A(f"v_mul_f32 v{12+n}, 0x3db504f3, v{12+n}")
    A("v_cvt_pk_bf16_f32 v16, v12, v13\nv_cvt_pk_bf16_f32 v17, v14, v15"); unpack(12, 16, 2)
    A("v_max3_f32 v16, v12, v13, v14\nv_max_f32 v16, v16, v15")
    red([16], 20, [4, 8, 32], "max")
    for n in range(4): A(f"v_sub_f32 v{12+n}, v{12+n}, v16")
    for n in range(4): A(f"v_mul_f32 v{12+n}, {LOG2E}, v{12+n}")
    for n in range(4): A(f"v_exp_f32 v{12+n}, v{12+n}")
    A("v_cvt_pk_bf16_f32 v20, v12, v13\nv_cvt_pk_bf16_f32 v21, v14, v15\nv_add_f32 v17, v12, v13\nv_add_f32 v14, v14, v15\nv_add_f32 v17, v17, v14")
    execm("0x11111111", "0x11111111"); A(f"ds_write_b64 v11, v[20:21] offset:{L_S}\ns_mov_b64 exec, -1\nds_read_b128 v[20:23], v9 offset:{L_S}")
    red([17], 12, [4, 8, 32])
    execm("0x00010001", "0"); A(f"ds_write_b64 v6, v[16:17] offset:{L_ML}\ns_mov_b64 exec, -1\nds_read_b32 v16, v6 offset:{L_ML}")
    kv(nsc, 16)
    ST(3)
    A(BAR)
    for k in range(4): A(f"ds_read_b128 {R(T+4*k,4)}, v8 offset:{L_ML+16*k}")
    A("s_cmp_eq_u32 s69, 1\ns_cbranch_scc1 Lax\ns_cmp_eq_u32 s69, 2\ns_cbranch_scc1 Lay")
    def max8():
        A(f"v_max3_f32 v12, v{T}, v{T+2}, v{T+4}\nv_max3_f32 v13, v{T+6}, v{T+8}, v{T+10}\nv_max3_f32 v12, v12, v{T+12}, v{T+14}\nv_max_f32 v12, v12, v13")
    def pv(nw):
        A("s_waitcnt lgkmcnt(0)")
        max8()
        A(f"v_sub_f32 v16, v16, v12\nv_mul_f32 v16, {LOG2E}, v16\nv_exp_f32 v16, v16")
        for p in range(4):
            if p >= 2: A(f"s_waitcnt vmcnt({nw+6-2*p})")
            elif p == 0: A(f"s_waitcnt vmcnt({nw+4})")
            if p == 3: ST(5)
            for c in range(8): A(f"v_perm_b32 v{K+c*4+p}, v{V+(2*p+1)*4+(c>>1)}, v{V+2*p*4+(c>>1)}, s{65+(c&1)}")
        for c in range(8): A(f"v_mfma_f32_16x16x32_bf16 {R(V+4*c,4)}, v[20:23], {R(K+4*c,4)}, 0")
        for n in range(4): A(f"v_cndmask_b32 v{12+n}, v{V+16+4*n}, v{V+4*n}, s[36:37]")
        for n in range(4): A(f"v_mul_f32 v{12+n}, v{12+n}, v16")
        A(f"ds_write_b128 v10, v[12:15] offset:{L_OP}")
        A(BAR)
    pv(0)
    A("s_branch Lfin")
    A("Lay:"); ysoff(); w1a(); pv(n1)
    if P["ylate"] == 2: A("s_barrier")
    A("s_branch Ly")
    A("""Lax:
    s_lshl_b32 s42, s58, 3
    s_add_u32 s42, s42, s50
    s_mul_i32 s42, s42, 36864
    s_lshl_b32 s43, s59, 7
    s_add_u32 s42, s42, s43""")
    nx = P["nx"]; wl4(W, 20, 30, 42, 4608, range(nx)); pv(nx)
    if nx < 4: A("s_barrier"); wl4(W, 20, 30, 42, 4608, range(nx, 4))
    ST(6)
    A(f"""s_mul_i32 s42, s58, 18432
    s_add_u32 s42, s42, {WS_A+1024}
    s_add_u32 s47, s42, 9216
    s_lshl_b32 s43, s50, 7
    s_add_u32 s43, s43, s42
    s_sub_u32 s43, s43, 1024
    s_add_u32 s48, s43, 9216
    v_lshrrev_b32 v8, 3, v1
    v_mul_u32_u24 v8, 1152, v8
    v_and_b32 v9, 7, v1
    v_lshl_add_u32 v9, v9, 4, v8
    s_lshl_b32 s41, s50, 9
    v_add_u32 v24, s41, v26""")
    def wop(n): A(f"s_waitcnt vmcnt({n})"); perms(K, W, 4, 4); ST(7)
    if not P["xo"]: wop(0)
    if P["da"]: A(f"s_sleep {P['da']}")
    ld = "\n".join(f"buffer_load_dwordx4 {R(T+4*k,4)}, v9, s[28:31], s{so} offen sc1" for k, so in enumerate((43, 48, 42, 47)))
    l = ld.split("\n")
    mpoll([(l[0] + "\n" + l[2], [T, T+8]), (l[1] + "\n" + l[3], [T+4, T+12])], after=(lambda: wop(4)) if P["xo"] else None)
    ST(8)

    A(f"s_cmp_lt_u32 s50, 4\ns_cbranch_scc1 Lx0\nv_mov_b32 v{T+8}, v{T+10}\nv_mov_b32 v{T+9}, v{T+11}\nv_mov_b32 v{T+12}, v{T+14}\nv_mov_b32 v{T+13}, v{T+15}\nLx0:")
    A(f"v_max_f32 v12, v{T+8}, v{T+12}")
    red([12], 13, [8, 16, 32], "max")
    A(f"v_sub_f32 v13, v{T+12}, v12\nv_sub_f32 v12, v{T+8}, v12\nv_mul_f32 v13, {LOG2E}, v13\nv_mul_f32 v12, {LOG2E}, v12\nv_exp_f32 v13, v13\nv_exp_f32 v12, v12")
    A(f"v_mul_f32 v{T+9}, v{T+9}, v12\nv_fmac_f32 v{T+9}, v{T+13}, v13")
    for e in range(4): A(f"v_mul_f32 v{T+e}, v{T+e}, v12")
    for e in range(4): A(f"v_fmac_f32 v{T+e}, v{T+4+e}, v13")
    red([T + 9] + [T + e for e in range(4)], 0, [8])
    A(f"""v_mov_b32 v13, v{T+9}
    v_permlane16_swap_b32 v{T}, v{T+1}
    v_permlane16_swap_b32 v{T+2}, v{T+3}
    v_permlane16_swap_b32 v13, v{T+9}
    v_add_f32 v{T}, v{T}, v{T+1}
    v_add_f32 v{T+2}, v{T+2}, v{T+3}
    v_add_f32 v13, v13, v{T+9}
    v_mov_b32 v12, v13
    v_permlane32_swap_b32 v{T}, v{T+2}
    v_permlane32_swap_b32 v12, v13
    v_add_f32 v12, v12, v13
    v_rcp_f32 v12, v12
    v_add_f32 v{T}, v{T}, v{T+2}
    v_mul_f32 v{T}, v{T}, v12""")
    for j in range(4): A(f"v_mov_b32_dpp v{T+4+j}, v{T} quad_perm:[{j},{j},{j},{j}] row_mask:0xf bank_mask:0xf")
    A(f"v_cvt_pk_bf16_f32 v12, v{T+4}, v{T+5}\nv_cvt_pk_bf16_f32 v13, v{T+6}, v{T+7}")
    for c in range(8): A(f"v_mfma_f32_16x16x16_bf16 {R(V+4*c,4)}, v[12:13], {R(K+2*c,2)}, 0")
    comb(V); A("s_barrier\ns_branch Lz")
    A("Lhelp:\ns_setprio 3")
    ntouch = 0
    if P["touch"]:
        ntouch = 4
        A(f"""s_mul_i32 s42, s58, 9
        s_add_u32 s42, s42, s59
        s_mul_i32 s42, s42, {BS}
        s_add_u32 s42, s42, {WS_B}
        s_add_u32 s43, s42, {WS_C-WS_B}
        s_lshl_b32 s44, s70, 8
        s_add_u32 s44, s44, {WS_H}
        s_cmp_eq_u32 s69, 2
        s_cselect_b32 s42, s44, s42
        v_lshlrev_b32 v24, 7, v1
        v_mov_b32 v25, 0x80000000
        v_cmp_gt_u32 vcc, 2, v1
        v_cndmask_b32 v20, v25, v24, vcc
        v_cmp_gt_u32 vcc, 9, v1
        v_cndmask_b32 v21, v25, v24, vcc
        buffer_load_dword v32, v20, s[28:31], s55 offen sc1
        buffer_load_dword v33, v21, s[28:31], s51 offen sc1
        buffer_load_dword v34, v20, s[28:31], s42 offen sc1
        buffer_load_dword v35, v20, s[28:31], s43 offen sc1""")
    qphase(ntouch)
    gather_pub(9, L_QP, "s55")
    ST(3)
    if P["pb"]: A("s_barrier")
    A(f"s_lshl_b32 s42, s58, 12\ns_add_u32 s42, s42, {WS_Q}\ns_sleep {P['dq'][0]}")
    poll("\n".join(f"buffer_load_dwordx4 {R(T+4*k,4)}, v7, s[28:31], s42 offen offset:{k*1024} sc1" for k in range(4)), [T + 4 * k for k in range(4)], 12)
    ST(4)
    for j in range(4): tree([T + j + 4 * k for k in range(4)])
    A(f"v_cvt_pk_bf16_f32 v12, v{T}, v{T+1}\nv_cvt_pk_bf16_f32 v13, v{T+2}, v{T+3}\nv_lshlrev_b32 v8, 3, v1\nds_write_b64 v8, v[12:13] offset:{L_Q}")
    A(BAR)
    A("v_lshrrev_b32 v8, 5, v1\nv_lshlrev_b32 v8, 6, v8\ns_barrier")
    for k in range(4): A(f"ds_read_b128 {R(T+4*k,4)}, v8 offset:{L_ML+16*k}")
    A("s_cmp_eq_u32 s69, 2\ns_cbranch_scc0 Lh1"); ysoff(); w1a(); A("Lh1:\ns_waitcnt lgkmcnt(0)")
    max8()
    for e in range(8): A(f"v_sub_f32 v{T+2*e}, v{T+2*e}, v12")
    for e in range(8): A(f"v_mul_f32 v{T+2*e}, {LOG2E}, v{T+2*e}")
    for e in range(8): A(f"v_exp_f32 v{T+2*e}, v{T+2*e}")
    for e in range(8): A(f"v_mul_f32 v{T+2*e}, v{T+2*e}, v{T+2*e+1}")
    tree([T + 2 * e for e in range(8)])
    A(f"v_mov_b32 v14, v12\nv_mov_b32 v13, v{T}\nv_mov_b32 v15, v{T}\nv_permlane32_swap_b32 v12, v14\nv_permlane32_swap_b32 v13, v15")
    tag(12)
    A("s_barrier")
    ST(6)
    for k in range(8): A(f"ds_read_b128 {R(T+4*k,4)}, v7 offset:{L_OP+k*1024}")
    execm("0xff", "0")
    A("buffer_store_dwordx4 v[12:15], v7, s[28:31], s51 offen offset:1024 sc1\ns_mov_b64 exec, -1\ns_waitcnt lgkmcnt(0)")
    for st in (16, 8, 4):
        for k in range(0, st, 2): A(f"v_pk_add_f32 {R(T+k,2)}, {R(T+k,2)}, {R(T+k+st,2)}")
    tag(T)
    A(f"buffer_store_dwordx4 {R(T,4)}, v7, s[28:31], s51 offen sc1")
    ST(7)
    if P["ylate"] == 2: A("s_cmp_eq_u32 s69, 2\ns_cbranch_scc0 Lh2\ns_barrier\nLh2:")
    A("s_cmp_eq_u32 s69, 2\ns_cbranch_scc1 Ly\ns_cmp_eq_u32 s69, 1\ns_cbranch_scc0 Lfin")
    A(f"s_mul_i32 s42, s58, 9\ns_add_u32 s42, s42, s59\ns_mul_i32 s42, s42, {BS}\ns_add_u32 s49, s42, {WS_B}\ns_barrier")
    if nx < 4: A("s_barrier")
    ST(9)
    gather_pub(16, L_OP, "s49")
    ST(10)
    A("s_barrier")
    A(f"""Lz:
    s_mul_i32 s42, s58, 9
    s_add_u32 s42, s42, s3
    s_lshl_b32 s43, s42, 7
    s_add_u32 s43, s43, {WS_H}
    s_mul_i32 s42, s42, 36864
    s_lshl_b32 s44, s59, 7
    s_add_u32 s42, s42, s44""")
    if P["dw"]: A(f"s_sleep {P['dw']}")
    wl4(W, 24, 27, 42, 1152, range(4))
    A(f"""v_bfe_u32 v10, v2, 2, 1
    v_lshl_add_u32 v10, v10, 2, v3
    v_lshlrev_b32 v10, 4, v10
    s_lshl_b32 s41, s3, 9
    v_add_u32 v24, s41, v26
    s_waitcnt vmcnt(0)""")
    perms(K, W, 4, 4)
    ST(11)
    if P["dz"]: A(f"s_sleep {P['dz']}")
    ppoll(lambda b: A(f"buffer_load_dwordx4 {R(b,4)}, v10, s[28:31], s43 offen sc1"), [W + 4 * k for k in range(P["nph"])], 1,
          lambda b: A(f"v_perm_b32 v12, v{b+1}, v{b}, s66\nv_perm_b32 v13, v{b+3}, v{b+2}, s66"))
    ST(12)
    for c in range(8): A(f"v_mfma_f32_16x16x16_bf16 {R(V+4*c,4)}, v[12:13], {R(K+2*c,2)}, 0")
    comb(V)
    A(f"s_cmp_eq_u32 s3, 0\ns_cbranch_scc0 Lfin\ns_add_u32 s49, s49, {WS_C-WS_B}")
    gather_pub(18, L_OP, "s49")
    ST(5)
    A("s_branch Lfin")
    A("Ly:")
    wl4(W, 20, 29, 42, 9216, range(n1, 8))
    A(f"""v_lshrrev_b32 v8, 2, v2
    v_mul_u32_u24 v8, {36*BS}, v8
    v_and_b32 v9, 3, v2
    v_lshl_add_u32 v9, v3, 2, v9
    v_lshl_add_u32 v8, v9, 4, v8
    s_mul_i32 s41, s3, {BS}
    v_add_u32 v8, s41, v8
    s_lshl_b32 s41, s3, 7
    v_lshl_add_u32 v9, v9, 3, s41
    v_bfe_u32 v10, v2, 2, 1
    v_lshl_add_u32 v10, v10, 2, v3
    v_lshl_add_u32 v10, v10, 4, s41
    s_lshl_b32 s41, s3, 9
    v_add_u32 v24, s41, v26
    s_lshl_b32 s41, s3, 3
    v_mov_b32 v25, s41
    v_mov_b32 v16, 0x3f803f80
    v_mov_b32 v17, 0x3f803f80
    s_mov_b32 s42, {WS_B + P["bcol"]*BS}
    s_lshl_b32 s43, s70, 8
    s_add_u32 s43, s43, {WS_H}""")
    unpack(V, 18, 2)
    A("s_waitcnt vmcnt(0)")
    ST(8)
    perms(K, W, 8, 4)
    if P["bth"]:
        A(f"""s_cmp_eq_u32 s3, 0
        s_cbranch_scc0 Lg1
        v_mul_u32_u24 v14, {9*BS}, v1
        s_mov_b32 s40, {P['maxpoll']}
        s_mov_b64 exec, 0xffff
        Lg0:
        buffer_load_dwordx4 {R(T,4)}, v14, s[28:31], s42 offen sc1
        s_waitcnt vmcnt(0)""")
        check([T], 12)
        A(f"""s_bcnt1_i32_b64 s41, vcc
        s_cmp_le_u32 s41, {16-P['bth']}
        s_cbranch_scc1 Lg2
        s_mov_b64 exec, vcc
        s_sub_u32 s40, s40, 1
        s_cbranch_scc0 Lg0
        Lg2:
        s_mov_b64 exec, -1
        Lg1:
        s_barrier""")
    if P["db"]: A(f"s_sleep {P['db']}")
    def bread(last):
        ld = lambda b: "\n".join(f"buffer_load_dwordx4 {R(b+4*k,4)}, v8, s[28:31], s{52+k} offen sc1" for k in range(4))
        for k in range(4): A(f"s_mov_b32 s{52+k}, {(WS_C if last else WS_B) + k*9*BS}")
        def fin(b):
            for k in range(0, 8, 2): A(f"v_pk_add_f32 {R(T+k,2)}, {R(b+k,2)}, {R(b+k+8,2)}")
        if last: ppoll(lambda b: A(ld(b)), [K, K + 16, W, W + 16][:P["npc"]], 4, fin)
        else: mpoll([(l, [T + 4 * k]) for k, l in enumerate(ld(T).split("\n"))]); fin(T)
        ST(11 if last else 9)
        for k in (0, 2): A(f"v_pk_add_f32 {R(T+k,2)}, {R(T+k,2)}, {R(T+k+4,2)}")
        red([T + j for j in range(4)], 0, [4, 8])
        A(f"v_cvt_pk_bf16_f32 v12, v{T}, v{T+1}\nv_cvt_pk_bf16_f32 v13, v{T+2}, v{T+3}")
        unpack(T, 12, 2)
        for j in (0, 2): A(f"v_pk_add_f32 {R(T+j,2)}, {R(T+j,2)}, {R(V+j,2)}")
        A(f"v_cvt_pk_bf16_f32 v12, v{T}, v{T+1}\nv_cvt_pk_bf16_f32 v13, v{T+2}, v{T+3}")
    bread(0)
    A(f"v_mfma_f32_16x16x16_bf16 {R(T+8,4)}, v[12:13], v[12:13], 0\nv_mfma_f32_16x16x16_bf16 {R(T+4,4)}, v[12:13], v[16:17], 0")
    unpack(V, 12, 2)
    for j in range(1, 4): dppadd(T + 8, T + 8 + j, f"quad_perm:[{j},{j},{j},{j}]")
    A(f"v_pk_add_f32 {R(T+4,2)}, {R(T+4,2)}, {R(T+6,2)}\nv_add_f32 v22, v{T+4}, v{T+5}\nv_mov_b32 v23, v{T+8}")
    execm("1", "0"); A(f"ds_write_b64 v25, v[22:23] offset:{L_ST}\ns_mov_b64 exec, -1")
    A(BAR)
    for k in range(4): A(f"ds_read_b128 {R(T+8+4*k,4)}, v28 offset:{L_ST+16*k}")
    A(f"ds_read_b64 v[22:23], v28 offset:{L_ST+64}\ns_waitcnt lgkmcnt(0)")
    for st in (8, 4, 2):
        for k in range(0, st, 2): A(f"v_pk_add_f32 {R(T+8+k,2)}, {R(T+8+k,2)}, {R(T+8+k+st,2)}")
    A(f"v_pk_add_f32 v[22:23], v[22:23], {R(T+8,2)}")
    lnscale(22, 23, 21); lnorm(T, 12, 22, 23, V)
    A(f"ds_write_b64 v9, v[12:13] offset:{L_HN}\nds_read_b128 v[12:15], v10 offset:{L_HN}\ns_waitcnt lgkmcnt(0)")
    for c in range(8): A(f"v_mfma_f32_16x16x32_bf16 {R(T+4*c,4)}, v[12:15], {R(K+4*c,4)}, 0")
    comb(T)
    ST(10)
    A("s_cmp_eq_u32 s3, 0\ns_cbranch_scc0 Ly2\nv_mov_b32 v14, v8")
    gather_pub(18, L_OP, "s43", relu=1)
    ST(12)
    A(f"v_mov_b32 v8, v14\nLy2:\ns_lshl_b32 s41, s3, 3\ns_cmp_eq_u32 s41, s70\ns_cbranch_scc0 Lfin\ns_mov_b32 s42, {WS_C}\ns_sleep {P['dr']}")
    bread(1)
    execm("0x000f000f", "0x000f000f"); A("buffer_store_dwordx2 v[12:13], v9, s[32:35], 0 offen")
    ST(5)
    if P["dbgt"]:
        A("""s_load_dwordx2 s[44:45], s[0:1], 72
        s_memrealtime s[74:75]
        s_mov_b32 s46, 256
        s_mov_b32 s47, 0x20000
        s_waitcnt lgkmcnt(0)
        s_sub_u32 s74, s74, s72
        v_mov_b32 v14, s74
        s_lshl_b32 s41, s3, 2
        buffer_store_dword v14, v28, s[44:47], s41 offen""")
    A("s_cmp_eq_u32 s3, 0\ns_cbranch_scc0 Lfin\nv_mov_b32 v12, s64"); execm("1", "0")
    A("buffer_store_dword v12, v28, s[28:31], 0 offen sc1")
    A("Lfin:\ns_waitcnt vmcnt(0)")
    if P["stamp"]:
        A("s_mov_b64 exec, -1\ns_waitcnt vmcnt(0)"); ST(13)
        A("s_lshl4_add_u32 s41, s2, s3\ns_lshl_b32 s41, s41, 7\ns_add_u32 s41, s41, 0x10000000\nv_lshlrev_b32 v8, 2, v1\nv_mov_b32 v9, 0\ns_waitcnt lgkmcnt(0)")
        for k in range(14): A(f"v_writelane_b32 v9, s{72+2*k}, {k}")
        execm("0xffff", "0"); A("buffer_store_dword v9, v8, s[28:31], s41 offen")
    A("Lend:")
    body = "\n".join(out)
    body = body.replace("s_mov_b64 s[4:5], s[36:37]", "s_mov_b64 s[4:5], s[36:37]\n    s_mov_b32 s13, s41").replace("s41x", "s13")
    if P["stamp"]: body = "\n".join(f"    s_mov_b32 s{72+2*k}, 0" for k in range(1, 14)) + "\n" + body
    body, n = pad(body)
    ref = open("cdna_kernels/" + KN[:-7] + ".s.ref").read()
    head = ref[:ref.index(KN + ":") + len(KN) + 1].replace("grid=(3,1,1) block=(256,1,1) lds=0", f"grid=(256,1,1) block=(576,1,1) lds={L_END}")
    tail = ref[ref.index("s_endpgm"):].replace("next_free_vgpr 256", "next_free_vgpr 160").replace("accum_offset 256", "accum_offset 160")
    return head + "\n" + body + "\n" + tail

if __name__ == "__main__":
    kw = {}
    for a in sys.argv[2:]:
        k, v = a.split("="); kw[k] = eval(v)
    open(sys.argv[1], "w").write(gen(**kw))
```

```python
import sys, os
sys.path.insert(0, os.path.dirname(__file__))
from asmlib import pad
KN = "sequential_preLN__sliding_block_cached__dense_activation_relu__decode_kernel"
WS_Q, WS_A, WS_B, WS_H, WS_C = 0x10000, 0x20000, 0x200000, 0x90000, 0x400000
L_QP, L_Q, L_S, L_OP, L_XP, L_ST, L_HN, L_H1, L_END = 0, 2560, 3072, 5120, 13312, 15616, 15872, 17408, 18560
L_ML = L_S + 1024
LOFF = 0x200000
LOG2E = "0x3fb8aa3b"
DEF = dict(stamp=0, xw=1, zw=1, qm=0, qw=1, dq=0, da=0, db=0, dr=0, dz=0, dbgt=0, bth=6, b0=1, BS=256, bl2=0, al2=0, bcol=4, nph=3, npc=3, pp=0, dw=0, dsw=16, D2=4, rs=0, maxpoll=4000, touch=1, nk0=2, ym=2, pb=0, n1=2, n2=4, loca=0, locq=0, mask=1, pf=0, nx=1, ybar=1, xo=1, pnt="nt", dend=13, w2f=0, ylate=2, bad=0, D=3, nv0=8, nt="nt", wnt="nt")

def gen(**kw):
    P = dict(DEF); P.update(kw)
    out = []; A = lambda s: out.extend("    " + x.strip() if not x.strip().endswith(":") else x.strip() for x in s.strip().split("\n"))
    BS = P["BS"]
    nt, wnt = P["nt"], P["wnt"]
    def ST(k):
        if P["stamp"]: A(f"s_memrealtime s[{72+2*k}:{73+2*k}]")
    R = lambda b, n: f"v[{b}:{b+n-1}]"
    K, V, W, T = 32, 64, 96, 128
    lab = [0]
    def dppadd(d, s, ctrl, op="add"): A(f"v_{op}_f32_dpp v{d}, v{s}, v{d} {ctrl} row_mask:0xf bank_mask:0xf")
    def swapred(regs, tmp, which, op="add"):
        for n, r in enumerate(regs): A(f"v_mov_b32 v{tmp+n}, v{r}")
        for n, r in enumerate(regs): A(f"v_permlane{which}_swap_b32 v{tmp+n}, v{r}")
        for n, r in enumerate(regs): A(f"v_{op}_f32 v{r}, v{tmp+n}, v{r}")
    def red(regs, tmp, steps, op="add"):
        for s in steps:
            if s in (16, 32): swapred(regs, tmp, s, op)
            else:
                for r in regs: dppadd(r, r, {1: "quad_perm:[1,0,3,2]", 2: "quad_perm:[2,3,0,1]", 4: "row_ror:4", 8: "row_ror:8"}[s], op)
    def tag(b):
        for j in range(4): A(f"v_and_or_b32 v{b+j}, v{b+j}, v4, s{60+j}")
    def untag(b, n=4):
        for j in range(n): A(f"v_and_b32 v{b+j}, v4, v{b+j}")
    def check(gr, t, dst="vcc"):
        rs = [b + j for b in gr for j in range(4)]
        for r in rs: A(f"v_xor_b32 v{r}, s{60+(r&3)}, v{r}")
        acc = []
        for k, part in enumerate((rs[:len(rs)//2], rs[len(rs)//2:]) if len(rs) > 4 else (rs,)):
            A(f"v_or3_b32 v{t+k}, v{part[0]}, v{part[1]}, v{part[2]}"); part = part[3:]
            while len(part) > 1: A(f"v_or3_b32 v{t+k}, v{t+k}, v{part[0]}, v{part[1]}"); part = part[2:]
            acc += part
        if len(rs) > 4: A(f"v_or3_b32 v{t}, v{t}, v{acc[0]}, v{acc[1]}\nv_or_b32 v{t}, v{t}, v{t+1}")
        else: A(f"v_or_b32 v{t}, v{t}, v{acc[0]}")
        A(f"v_cmp_ne_u32_sdwa {dst}, v{t}, v28 src0_sel:BYTE_0 src1_sel:DWORD")
    def ppoll(ld, sets, ng, fin):
        lab[0] += 1; n = lab[0]; m = len(sets)
        A(f"s_mov_b32 s40, {P['maxpoll']}")
        for k, b in enumerate(sets):
            if k and P['pp']: A(f"s_sleep {P['pp']}")
            ld(b)
        A(f"Lp{n}:")
        for k, b in enumerate(sets):
            A(f"s_waitcnt vmcnt({ng*(m-1)})"); check([b + 4 * j for j in range(ng)], 12)
            A(f"s_cbranch_vccz Lq{n}_{k}"); ld(b)
        A(f"s_sub_u32 s40, s40, 1\ns_cbranch_scc0 Lp{n}")
        for k, b in enumerate(sets):
            A(f"Lq{n}_{k}:"); fin(b)
            if k < m - 1: A(f"s_branch Lq{n}")
        A(f"Lq{n}:")
    def mpoll(groups, after=None):
        lab[0] += 1; n = lab[0]; M = lambda k: f"s[{4+2*k}:{5+2*k}]"
        A(f"s_mov_b32 s40, {P['maxpoll']}")
        for ld, gr in groups: A(ld)
        if after: after()
        left = sum(len(gr) for ld, gr in groups)
        for k, (ld, gr) in enumerate(groups):
            left -= len(gr); A(f"s_waitcnt vmcnt({left})"); check(gr, 12 + 2 * (k & 1), M(k))
        A(f"Lp{n}:\ns_or_b64 vcc, {M(0)}, {M(1)}")
        for k in range(2, len(groups)): A(f"s_or_b64 vcc, vcc, {M(k)}")
        A(f"s_cbranch_scc0 Lq{n}\ns_sub_u32 s40, s40, 1\ns_cbranch_scc1 Lq{n}")
        if P["rs"]: A(f"s_sleep {P['rs']}")
        for k, (ld, gr) in enumerate(groups):
            A(f"s_mov_b64 exec, {M(k)}\ns_cbranch_execz Lm{n}_{k}"); A(ld); A(f"Lm{n}_{k}:")
        A("s_waitcnt vmcnt(0)")
        for k, (ld, gr) in enumerate(groups):
            A(f"s_mov_b64 exec, {M(k)}\ns_cbranch_execz Ln{n}_{k}"); check(gr, 12 + 2 * (k & 1), M(k)); A(f"Ln{n}_{k}:")
        A(f"s_mov_b64 exec, -1\ns_branch Lp{n}\nLq{n}:")
    def poll(loads, gr, t, after=None, nafter=0, first=0):
        lab[0] += 1; n = lab[0]
        A(f"s_mov_b32 s40, {P['maxpoll']}")
        A(loads.replace(" sc1", "") if first else loads)
        if after: after()
        A(f"s_waitcnt vmcnt({nafter})")
        A(f"Lp{n}:")
        check(gr, t)
        A(f"s_cbranch_vccz Lq{n}\ns_sub_u32 s40, s40, 1\ns_cbranch_scc1 Lq{n}")
        if P["rs"]: A(f"s_sleep {P['rs']}")
        A("s_mov_b64 exec, vcc")
        A(loads); A(f"s_waitcnt vmcnt(0)\ns_branch Lp{n}\nLq{n}:\ns_mov_b64 exec, -1")
    def perms(dst, src, nld, w):
        for c in range(2 * w):
            for p in range(nld // 2):
                A(f"v_perm_b32 v{dst+c*(nld//2)+p}, v{src+(2*p+1)*w+(c>>1)}, v{src+2*p*w+(c>>1)}, s{65+(c&1)}")
    def wloads(dst, srd, voff, sbase, stride, es):
        for e in es:
            A(f"s_add_u32 s41, s{sbase}, {e*stride}\nbuffer_load_dwordx2 {R(dst+2*e,2)}, v{voff}, s[{srd}:{srd+3}], s41 offen {wnt}")
    def wl4(dst, srd, voff, sbase, stride, es):
        for e in es:
            A(f"s_add_u32 s41, s{sbase}, {e*stride}\nbuffer_load_dwordx4 {R(dst+4*e,4)}, v{voff}, s[{srd}:{srd+3}], s41 offen {wnt}")
    def comb(D):
        for n in range(4): A(f"v_cndmask_b32 v{20+n}, v{D+16+4*n}, v{D+4*n}, s[36:37]")
        execm("0xff0000ff", "0xff0000ff"); A(f"ds_write_b128 v24, v[20:23] offset:{L_OP}\ns_mov_b64 exec, -1"); A(BAR)
    def lnscale(sm, sq, t):
        A(f"""v_mul_f32 v{sm}, 0x3ae38e39, v{sm}
        v_mul_f32 v{sq}, 0x3ae38e39, v{sq}
        v_fma_f32 v{sq}, -v{sm}, v{sm}, v{sq}
        v_max_f32 v{sq}, 0, v{sq}
        v_cvt_pk_bf16_f32 v{t}, v{sm}, v{sq}
        v_lshlrev_b32 v{sm}, 16, v{t}
        v_and_b32 v{sq}, 0xffff0000, v{t}
        v_add_f32 v{sq}, 0x3727c5ac, v{sq}
        v_cvt_pk_bf16_f32 v{sq}, v{sq}, v{sq}
        v_and_b32 v{sq}, 0xffff0000, v{sq}
        v_sqrt_f32 v{sq}, v{sq}
        v_cvt_pk_bf16_f32 v{sq}, v{sq}, v{sq}
        v_and_b32 v{sq}, 0xffff0000, v{sq}
        v_rcp_f32 v{sq}, v{sq}""")
    def lnorm(x, d, sm, sq, src=None):
        for j in (0, 2): A(f"v_pk_add_f32 {R(x+j,2)}, {R((src or x)+j,2)}, {R(sm,2)} op_sel_hi:[1,0] neg_lo:[0,1] neg_hi:[0,1]")
        A(f"v_cvt_pk_bf16_f32 v{d}, v{x}, v{x+1}\nv_cvt_pk_bf16_f32 v{d+1}, v{x+2}, v{x+3}")
        unpack(x, d, 2)
        for j in (0, 2): A(f"v_pk_mul_f32 {R(x+j,2)}, {R(x+j,2)}, {R(sm,2)} op_sel:[0,1] op_sel_hi:[1,1]")
        A(f"v_cvt_pk_bf16_f32 v{d}, v{x}, v{x+1}\nv_cvt_pk_bf16_f32 v{d+1}, v{x+2}, v{x+3}")
    def unpack(d, s, n):
        for j in range(n): A(f"v_and_b32 v{d+2*j+1}, 0xffff0000, v{s+j}\nv_lshlrev_b32 v{d+2*j}, 16, v{s+j}")
    def execm(lo, hi): A(f"s_mov_b32 exec_lo, {lo}\ns_mov_b32 exec_hi, {hi}")
    def gather_pub(n, base, soff, relu=0):
        A("v_lshlrev_b32 v8, 2, v1")
        for k in range(0, n - 1, 2): A(f"ds_read2st64_b32 {R(T+k,2)}, v8 offset0:{base//256+k} offset1:{base//256+k+1}")
        if n & 1: A(f"ds_read_b32 v{T+n-1}, v8 offset:{base+(n-1)*256}")
        A("s_waitcnt lgkmcnt(0)")
        pr = list(range(T, T + n - 1, 2))
        while len(pr) > 1:
            for a in range(0, len(pr) - 1, 2): A(f"v_pk_add_f32 {R(pr[a],2)}, {R(pr[a],2)}, {R(pr[a+1],2)}")
            pr = pr[0::2]
        A(f"v_add_f32 v{T}, v{T}, v{T+1}")
        if n & 1: A(f"v_add_f32 v{T}, v{T}, v{T+n-1}")
        if relu: A(f"v_max_f32 v{T}, 0, v{T}\nv_cvt_pk_bf16_f32 v{T}, v{T}, v{T}")
        for j in range(1, 4): A(f"v_mov_b32_dpp v{T+j}, v{T} quad_perm:[{j},{j},{j},{j}] row_mask:0xf bank_mask:0xf")
        tag(T); execm("0x11111111", "0x11111111")
        A(f"buffer_store_dwordx4 {R(T,4)}, v8, s[28:31], {soff} offen sc1\ns_mov_b64 exec, -1")
    def tree(rs):
        while len(rs) > 1:
            nx = []
            for a in range(0, len(rs) - 1, 2): A(f"v_add_f32 v{rs[a]}, v{rs[a]}, v{rs[a+1]}"); nx.append(rs[a])
            if len(rs) & 1: nx.append(rs[-1])
            rs = nx
    def d2lds(D, vaddr):
        for c in range(4): A(f"v_mov_b32 v{20+c}, v{D+4*c}")
        execm("0xffff", "0"); A(f"ds_write_b128 v{vaddr}, v[20:23]\ns_mov_b64 exec, -1")
    BAR = "s_waitcnt lgkmcnt(0)\ns_barrier"

    ST(0)
    if P["dbgt"]: A("s_memrealtime s[72:73]")
    A("""s_cmp_ge_u32 s2, 256
    s_cbranch_scc1 Lend
    s_load_dwordx16 s[36:51], s[0:1], 0
    s_load_dwordx2 s[32:33], s[0:1], 64
    s_load_dwordx2 s[28:29], s[0:1], 80
    v_lshrrev_b32 v5, 6, v0
    v_and_b32 v1, 63, v0
    v_readfirstlane_b32 s3, v5
    v_and_b32 v2, 15, v0
    v_lshrrev_b32 v3, 4, v1
    v_mov_b32 v4, 0xffffff00
    s_and_b32 s56, s2, 7
    s_lshr_b32 s57, s2, 3
    s_and_b32 s58, s57, 1
    s_lshl1_add_u32 s58, s56, s58
    s_lshr_b32 s59, s57, 1
    s_mov_b32 s65, 0x05040100
    s_mov_b32 s66, 0x07060302
    s_mov_b32 s67, 0x0c0c0400
    s_mov_b32 s68, 0x04000c0c
    s_mov_b32 s6, 1152
    s_mov_b32 s7, 0x20000
    s_mov_b32 s10, 65536
    s_mov_b32 s11, 0x20000
    s_mov_b32 s14, 65536
    s_mov_b32 s15, 0x20000
    s_mov_b32 s18, 4718592
    s_mov_b32 s19, 0x20000
    s_mov_b32 s23, 0x20000
    s_mov_b32 s26, 5308416
    s_mov_b32 s27, 0x20000
    s_mov_b32 s30, 0x40000000
    s_mov_b32 s31, 0x20000
    s_mov_b32 s34, 1152
    s_mov_b32 s35, 0x20000
    s_lshl_b32 s52, s58, 24
    s_add_u32 s53, s59, 240
    s_lshl_b32 s53, s53, 16
    s_add_u32 s52, s52, s53
    s_lshr_b32 s53, s59, 2
    s_mul_i32 s53, s53, 9
    s_add_u32 s53, s53, s3
    s_lshl_b32 s54, s53, 17
    s_lshl_b32 s53, s53, 5
    s_lshl_b32 s55, s58, 2
    s_and_b32 s69, s59, 3
    s_add_u32 s55, s55, s69
    s_lshl_b32 s55, s55, 7
    s_add_u32 s54, s54, s55
    v_lshlrev_b32 v7, 4, v1
    v_lshlrev_b32 v24, 3, v3
    v_and_b32 v25, 3, v0
    v_lshl_add_u32 v25, v3, 2, v25
    v_lshl_add_u32 v25, v5, 4, v25
    v_lshlrev_b32 v31, 3, v25
    v_lshlrev_b32 v26, 3, v2
    v_lshl_add_u32 v27, v3, 15, v26
    v_mov_b32 v28, 0
    s_mov_b32 s69, 0
    s_cmp_lt_u32 s57, 18
    s_cselect_b32 s69, 1, s69
    s_sub_u32 s70, s57, 18
    s_cmp_lt_u32 s70, 9
    s_cselect_b32 s69, 2, s69
    s_mul_i32 s71, s56, 9
    s_add_u32 s70, s70, s71
    s_waitcnt lgkmcnt(0)
    s_mov_b64 s[4:5], s[36:37]
    s_mov_b64 s[16:17], s[42:43]
    buffer_load_dword v6, v28, s[28:31], 0 offen sc1
    buffer_load_dwordx4 v[8:11], v7, s[4:7], 0 offen
    buffer_load_dwordx4 v[12:15], v7, s[4:7], 0 offen offset:1024
    buffer_load_dwordx2 v[16:17], v24, s[4:7], s53 offen
    buffer_load_dwordx2 v[18:19], v31, s[4:7], 0 offen""")
    wloads(T, 16, 27, 54, 8192, range(4))
    A("""s_add_u32 s8, s38, s52
    s_addc_u32 s9, s39, 0
    s_add_u32 s12, s40, s52
    s_addc_u32 s13, s41x, 0
    s_mov_b64 s[24:25], s[50:51]
    s_mov_b64 s[20:21], s[48:49]
    s_mov_b32 s22, 5308416
    s_cmp_eq_u32 s69, 1
    s_cbranch_scc0 Lnx
    s_mov_b64 s[20:21], s[44:45]
    s_mov_b32 s22, 4718592
    Lnx:
    v_lshrrev_b32 v20, 3, v2
    v_lshl_add_u32 v20, v20, 2, v3
    v_and_b32 v21, 7, v2
    v_lshlrev_b32 v21, 4, v21
    v_mul_u32_u24 v29, 73728, v20
    v_add_u32 v29, v29, v21
    v_mul_u32_u24 v27, 4608, v20
    v_add_u32 v27, v27, v21
    v_lshrrev_b32 v20, 1, v3
    v_lshlrev_b32 v26, 1, v21
    v_lshl_add_u32 v26, v20, 4, v26
    v_lshrrev_b32 v20, 3, v2
    v_lshl_add_u32 v26, v20, 8, v26
    v_lshl_add_u32 v20, v20, 4, v3
    v_mul_u32_u24 v30, 1152, v20
    v_add_u32 v30, v30, v21
    s_mov_b32 s36, -1
    s_mov_b32 s37, 0
    s_lshl4_add_u32 s55, s58, s59
    s_mul_i32 s51, s55, 1152
    s_add_u32 s51, s51, %d
    s_lshl_b32 s55, s55, 8
    s_add_u32 s55, s55, %d
    %s
    s_cmp_eq_u32 s3, 0
    s_cbranch_scc1 Lhelp""" % (WS_A, WS_Q, "s_barrier" if P["b0"] else "s_nop 0"))
    def qphase(nx):
        A(f"s_waitcnt vmcnt({4+nx})")
        ST(1)
        A("v_mov_b32 v20, 0x3f803f80\nv_dot2_f32_bf16 v21, v8, v20, 0\nv_dot2_f32_bf16 v22, v8, v8, 0\nv_dot2_f32_bf16 v23, v12, v20, 0\nv_dot2_f32_bf16 v24, v12, v12, 0")
        for j in range(1, 4):
            A(f"v_dot2_f32_bf16 v21, v{8+j}, v20, v21\nv_dot2_f32_bf16 v22, v{8+j}, v{8+j}, v22\nv_dot2_f32_bf16 v23, v{12+j}, v20, v23\nv_dot2_f32_bf16 v24, v{12+j}, v{12+j}, v24")
        A("v_readfirstlane_b32 s64, v6\nv_add_f32 v23, v21, v23\nv_add_f32 v21, v22, v24\nv_mov_b32 v22, v23\nv_mov_b32 v23, v21")
        red([22, 23], 20, [1, 2, 4, 8, 16, 32])
        A("s_mul_i32 s64, s64, 0x9E3779B1\ns_add_u32 s64, s64, 0x7F4A7C15\ns_and_b32 s60, s64, 0xff\ns_bfe_u32 s61, s64, 0x80008\ns_bfe_u32 s62, s64, 0x80010\ns_lshr_b32 s63, s64, 24")
        lnscale(22, 23, 21)
        unpack(8, 16, 2); lnorm(8, 16, 22, 23)
        A(f"s_lshl_b32 s41, s3, 8\nv_lshl_add_u32 v24, v2, 4, s41\ns_waitcnt vmcnt({nx})")
        ST(2)
        perms(T + 8, T, 4, 2)
        for c in range(4): A(f"v_mfma_f32_16x16x16_bf16 {R(T+16+4*c,4)}, v[16:17], {R(T+8+2*c,2)}, 0")
        d2lds(T + 16, 24)
        A(BAR)
    def ysoff():
        A("""s_mul_i32 s42, s3, 589824
        s_lshl_b32 s43, s70, 7
        s_add_u32 s42, s42, s43
        s_mul_i32 s43, s70, 73728
        s_lshl_b32 s44, s3, 7
        s_add_u32 s43, s43, s44""")
    n1 = P["n1"]
    def w1a(): wl4(W, 20, 29, 42, 9216, range(n1))
    A("""s_sub_u32 s50, s3, 1
    s_lshl_b32 s41, s50, 13
    v_lshrrev_b32 v24, 2, v2
    v_lshlrev_b32 v24, 11, v24
    v_lshl_add_u32 v24, v3, 6, v24
    v_and_b32 v25, 3, v2
    v_lshl_add_u32 v24, v25, 4, v24""")
    nk0 = P["nk0"]
    A("v_mov_b32 v5, v24")
    for n in range(nk0): A(f"buffer_load_dwordx4 {R(K+4*n,4)}, v5, s[8:11], s41 offen offset:{n*256} {nt}")
    qphase(nk0)
    A("v_lshlrev_b32 v24, 11, v3\nv_lshl_add_u32 v24, v2, 4, v24")
    if P["pb"]: A("s_barrier")
    def kv(lo, hi):
        for n in range(lo, hi):
            D = P["D"] if n < P["dsw"] else P["D2"]
            if D and n >= D and n < P["dend"]: A(f"s_waitcnt vmcnt({D-1})")
            A(f"buffer_load_dwordx4 {R(K+4*n,4)}, v{5 if n < 8 else 24}, s[{8 if n < 8 else 12}:{11 if n < 8 else 15}], s45 offen offset:{(n&7)*256} {nt}")
    nsc = 8 + P["nv0"]
    A("s_lshl_b32 s45, s50, 13")
    kv(nk0, nsc)
    A(f"""v_bfe_u32 v8, v2, 2, 1
    v_lshlrev_b32 v31, 8, v8
    v_lshl_add_u32 v31, v3, 6, v31
    v_lshl_add_u32 v31, v25, 4, v31
    s_lshl_b32 s41, s50, 7
    v_lshlrev_b32 v9, 6, v8
    v_lshl_add_u32 v9, v3, 4, v9
    v_add_u32 v9, s41, v9
    v_and_b32 v10, 1, v3
    v_lshlrev_b32 v8, 6, v10
    v_lshrrev_b32 v12, 2, v2
    v_lshl_add_u32 v11, v12, 4, v8
    v_lshrrev_b32 v12, 1, v3
    v_lshl_add_u32 v11, v12, 3, v11
    v_add_u32 v11, s41, v11
    v_lshlrev_b32 v10, 9, v10
    v_lshl_add_u32 v10, v2, 5, v10
    v_lshl_add_u32 v10, v12, 4, v10
    s_lshl_b32 s41, s50, 10
    v_add_u32 v10, s41, v10
    s_lshl_b32 s41, s50, 3
    v_add_u32 v6, s41, v8
    s_barrier
    ds_read_b128 v[20:23], v31 offset:{L_Q}
    s_waitcnt vmcnt({P['nv0']}) lgkmcnt(0)""")
    ST(4)
    for n in range(8): A(f"v_mfma_f32_16x16x32_bf16 {R(T+4*n,4)}, v[20:23], {R(K+4*n,4)}, 0")
    for j in range(1, 4):
        for n in range(8): dppadd(T + 4 * n, T + 4 * n + j, f"quad_perm:[{j},{j},{j},{j}]")
    for n in range(4): A(f"v_cndmask_b32 v{12+n}, v{T+16+4*n}, v{T+4*n}, s[36:37]")
    A("v_cvt_pk_bf16_f32 v16, v12, v13\nv_cvt_pk_bf16_f32 v17, v14, v15"); unpack(12, 16, 2)
    for n in range(4): A(f"v_mul_f32 v{12+n}, 0x3db504f3, v{12+n}")
    A("v_cvt_pk_bf16_f32 v16, v12, v13\nv_cvt_pk_bf16_f32 v17, v14, v15"); unpack(12, 16, 2)
    A("v_max3_f32 v16, v12, v13, v14\nv_max_f32 v16, v16, v15")
    red([16], 20, [4, 8, 32], "max")
    for n in range(4): A(f"v_sub_f32 v{12+n}, v{12+n}, v16")
    for n in range(4): A(f"v_mul_f32 v{12+n}, {LOG2E}, v{12+n}")
    for n in range(4): A(f"v_exp_f32 v{12+n}, v{12+n}")
    A("v_cvt_pk_bf16_f32 v20, v12, v13\nv_cvt_pk_bf16_f32 v21, v14, v15\nv_add_f32 v17, v12, v13\nv_add_f32 v14, v14, v15\nv_add_f32 v17, v17, v14")
    execm("0x11111111", "0x11111111"); A(f"ds_write_b64 v11, v[20:21] offset:{L_S}\ns_mov_b64 exec, -1\nds_read_b128 v[20:23], v9 offset:{L_S}")
    red([17], 12, [4, 8, 32])
    execm("0x00010001", "0"); A(f"ds_write_b64 v6, v[16:17] offset:{L_ML}\ns_mov_b64 exec, -1\nds_read_b32 v16, v6 offset:{L_ML}")
    kv(nsc, 16)
    ST(3)
    A(BAR)
    for k in range(4): A(f"ds_read_b128 {R(T+4*k,4)}, v8 offset:{L_ML+16*k}")
    A("s_cmp_eq_u32 s69, 1\ns_cbranch_scc1 Lax\ns_cmp_eq_u32 s69, 2\ns_cbranch_scc1 Lay")
    def max8():
        A(f"v_max3_f32 v12, v{T}, v{T+2}, v{T+4}\nv_max3_f32 v13, v{T+6}, v{T+8}, v{T+10}\nv_max3_f32 v12, v12, v{T+12}, v{T+14}\nv_max_f32 v12, v12, v13")
    def pv(nw):
        A("s_waitcnt lgkmcnt(0)")
        max8()
        A(f"v_sub_f32 v16, v16, v12\nv_mul_f32 v16, {LOG2E}, v16\nv_exp_f32 v16, v16")
        for p in range(4):
            if p >= 2: A(f"s_waitcnt vmcnt({nw+6-2*p})")
            elif p == 0: A(f"s_waitcnt vmcnt({nw+4})")
            if p == 3: ST(5)
            for c in range(8): A(f"v_perm_b32 v{K+c*4+p}, v{V+(2*p+1)*4+(c>>1)}, v{V+2*p*4+(c>>1)}, s{65+(c&1)}")
        for c in range(8): A(f"v_mfma_f32_16x16x32_bf16 {R(V+4*c,4)}, v[20:23], {R(K+4*c,4)}, 0")
        for n in range(4): A(f"v_cndmask_b32 v{12+n}, v{V+16+4*n}, v{V+4*n}, s[36:37]")
        for n in range(4): A(f"v_mul_f32 v{12+n}, v{12+n}, v16")
        A(f"ds_write_b128 v10, v[12:15] offset:{L_OP}")
        A(BAR)
    pv(0)
    A("s_branch Lfin")
    A("Lay:"); ysoff(); w1a(); pv(n1)
    if P["ylate"] == 2: A("s_barrier")
    A("s_branch Ly")
    A("""Lax:
    s_lshl_b32 s42, s58, 3
    s_add_u32 s42, s42, s50
    s_mul_i32 s42, s42, 36864
    s_lshl_b32 s43, s59, 7
    s_add_u32 s42, s42, s43""")
    nx = P["nx"]; wl4(W, 20, 30, 42, 4608, range(nx)); pv(nx)
    if nx < 4: A("s_barrier"); wl4(W, 20, 30, 42, 4608, range(nx, 4))
    ST(6)
    A(f"""s_mul_i32 s42, s58, 18432
    s_add_u32 s42, s42, {WS_A+1024}
    s_add_u32 s47, s42, 9216
    s_lshl_b32 s43, s50, 7
    s_add_u32 s43, s43, s42
    s_sub_u32 s43, s43, 1024
    s_add_u32 s48, s43, 9216
    v_lshrrev_b32 v8, 3, v1
    v_mul_u32_u24 v8, 1152, v8
    v_and_b32 v9, 7, v1
    v_lshl_add_u32 v9, v9, 4, v8
    s_lshl_b32 s41, s50, 9
    v_add_u32 v24, s41, v26""")
    def wop(n): A(f"s_waitcnt vmcnt({n})"); perms(K, W, 4, 4); ST(7)
    if not P["xo"]: wop(0)
    if P["da"]: A(f"s_sleep {P['da']}")
    if P["xw"] < 4: A(f"s_waitcnt vmcnt({P['xw']})")
    ld = "\n".join(f"buffer_load_dwordx4 {R(T+4*k,4)}, v9, s[28:31], s{so} offen sc1" for k, so in enumerate((43, 48, 42, 47)))
    l = ld.split("\n")
    mpoll([(l[0] + "\n" + l[2], [T, T+8]), (l[1] + "\n" + l[3], [T+4, T+12])], after=(lambda: wop(4)) if P["xo"] else None)
    ST(8)

    A(f"s_cmp_lt_u32 s50, 4\ns_cbranch_scc1 Lx0\nv_mov_b32 v{T+8}, v{T+10}\nv_mov_b32 v{T+9}, v{T+11}\nv_mov_b32 v{T+12}, v{T+14}\nv_mov_b32 v{T+13}, v{T+15}\nLx0:")
    A(f"v_max_f32 v12, v{T+8}, v{T+12}")
    red([12], 13, [8, 16, 32], "max")
    A(f"v_sub_f32 v13, v{T+12}, v12\nv_sub_f32 v12, v{T+8}, v12\nv_mul_f32 v13, {LOG2E}, v13\nv_mul_f32 v12, {LOG2E}, v12\nv_exp_f32 v13, v13\nv_exp_f32 v12, v12")
    A(f"v_mul_f32 v{T+9}, v{T+9}, v12\nv_fmac_f32 v{T+9}, v{T+13}, v13")
    for e in range(4): A(f"v_mul_f32 v{T+e}, v{T+e}, v12")
    for e in range(4): A(f"v_fmac_f32 v{T+e}, v{T+4+e}, v13")
    red([T + 9] + [T + e for e in range(4)], 0, [8])
    A(f"""v_mov_b32 v13, v{T+9}
    v_permlane16_swap_b32 v{T}, v{T+1}
    v_permlane16_swap_b32 v{T+2}, v{T+3}
    v_permlane16_swap_b32 v13, v{T+9}
    v_add_f32 v{T}, v{T}, v{T+1}
    v_add_f32 v{T+2}, v{T+2}, v{T+3}
    v_add_f32 v13, v13, v{T+9}
    v_mov_b32 v12, v13
    v_permlane32_swap_b32 v{T}, v{T+2}
    v_permlane32_swap_b32 v12, v13
    v_add_f32 v12, v12, v13
    v_rcp_f32 v12, v12
    v_add_f32 v{T}, v{T}, v{T+2}
    v_mul_f32 v{T}, v{T}, v12""")
    for j in range(4): A(f"v_mov_b32_dpp v{T+4+j}, v{T} quad_perm:[{j},{j},{j},{j}] row_mask:0xf bank_mask:0xf")
    A(f"v_cvt_pk_bf16_f32 v12, v{T+4}, v{T+5}\nv_cvt_pk_bf16_f32 v13, v{T+6}, v{T+7}")
    for c in range(8): A(f"v_mfma_f32_16x16x16_bf16 {R(V+4*c,4)}, v[12:13], {R(K+2*c,2)}, 0")
    comb(V); A("s_barrier\ns_branch Lz")
    A("Lhelp:\ns_setprio 3")
    ntouch = 0
    if P["touch"]:
        ntouch = 4
        A(f"""s_mul_i32 s42, s58, 9
        s_add_u32 s42, s42, s59
        s_mul_i32 s42, s42, {BS}
        s_add_u32 s42, s42, {WS_B}
        s_add_u32 s43, s42, {WS_C-WS_B}
        s_lshl_b32 s44, s70, 8
        s_add_u32 s44, s44, {WS_H}
        s_cmp_eq_u32 s69, 2
        s_cselect_b32 s42, s44, s42
        v_lshlrev_b32 v24, 7, v1
        v_mov_b32 v25, 0x80000000
        v_cmp_gt_u32 vcc, 2, v1
        v_cndmask_b32 v20, v25, v24, vcc
        v_cmp_gt_u32 vcc, 9, v1
        v_cndmask_b32 v21, v25, v24, vcc
        buffer_load_dword v32, v20, s[28:31], s55 offen sc1
        buffer_load_dword v33, v21, s[28:31], s51 offen sc1
        buffer_load_dword v34, v20, s[28:31], s42 offen sc1
        buffer_load_dword v35, v20, s[28:31], s43 offen sc1""")
    qphase(ntouch)
    gather_pub(9, L_QP, "s55")
    ST(3)
    if P["pb"]: A("s_barrier")
    A(f"s_lshl_b32 s42, s58, 12\ns_add_u32 s42, s42, {WS_Q}")
    if P["dq"]: A(f"s_sleep {P['dq']}")
    ql = [f"buffer_load_dwordx4 {R(T+4*k,4)}, v7, s[28:31], s42 offen offset:{k*1024} sc1" for k in range(4)]
    if P["qw"]: A("s_waitcnt vmcnt(0)")
    if P["qm"]: mpoll([(ql[k], [T + 4 * k]) for k in range(4)])
    else: poll("\n".join(ql), [T + 4 * k for k in range(4)], 12)
    ST(4)
    for j in range(4): tree([T + j + 4 * k for k in range(4)])
    A(f"v_cvt_pk_bf16_f32 v12, v{T}, v{T+1}\nv_cvt_pk_bf16_f32 v13, v{T+2}, v{T+3}\nv_lshlrev_b32 v8, 3, v1\nds_write_b64 v8, v[12:13] offset:{L_Q}")
    A(BAR)
    A("v_lshrrev_b32 v8, 5, v1\nv_lshlrev_b32 v8, 6, v8\ns_barrier")
    for k in range(4): A(f"ds_read_b128 {R(T+4*k,4)}, v8 offset:{L_ML+16*k}")
    A("s_cmp_eq_u32 s69, 2\ns_cbranch_scc0 Lh1"); ysoff(); w1a(); A("Lh1:\ns_waitcnt lgkmcnt(0)")
    max8()
    for e in range(8): A(f"v_sub_f32 v{T+2*e}, v{T+2*e}, v12")
    for e in range(8): A(f"v_mul_f32 v{T+2*e}, {LOG2E}, v{T+2*e}")
    for e in range(8): A(f"v_exp_f32 v{T+2*e}, v{T+2*e}")
    for e in range(8): A(f"v_mul_f32 v{T+2*e}, v{T+2*e}, v{T+2*e+1}")
    tree([T + 2 * e for e in range(8)])
    A(f"v_mov_b32 v14, v12\nv_mov_b32 v13, v{T}\nv_mov_b32 v15, v{T}\nv_permlane32_swap_b32 v12, v14\nv_permlane32_swap_b32 v13, v15")
    tag(12)
    A("s_barrier")
    ST(6)
    for k in range(8): A(f"ds_read_b128 {R(T+4*k,4)}, v7 offset:{L_OP+k*1024}")
    execm("0xff", "0")
    A("buffer_store_dwordx4 v[12:15], v7, s[28:31], s51 offen offset:1024 sc1\ns_mov_b64 exec, -1\ns_waitcnt lgkmcnt(0)")
    for st in (16, 8, 4):
        for k in range(0, st, 2): A(f"v_pk_add_f32 {R(T+k,2)}, {R(T+k,2)}, {R(T+k+st,2)}")
    tag(T)
    A(f"buffer_store_dwordx4 {R(T,4)}, v7, s[28:31], s51 offen sc1")
    ST(7)
    if P["ylate"] == 2: A("s_cmp_eq_u32 s69, 2\ns_cbranch_scc0 Lh2\ns_barrier\nLh2:")
    A("s_cmp_eq_u32 s69, 2\ns_cbranch_scc1 Ly\ns_cmp_eq_u32 s69, 1\ns_cbranch_scc0 Lfin")
    A(f"s_mul_i32 s42, s58, 9\ns_add_u32 s42, s42, s59\ns_mul_i32 s42, s42, {BS}\ns_add_u32 s49, s42, {WS_B}\ns_barrier")
    if nx < 4: A("s_barrier")
    ST(9)
    gather_pub(16, L_OP, "s49")
    ST(10)
    if P["zw"]: A("s_waitcnt vmcnt(0)")
    A("s_barrier")
    A(f"""Lz:
    s_mul_i32 s42, s58, 9
    s_add_u32 s42, s42, s3
    s_lshl_b32 s43, s42, 7
    s_add_u32 s43, s43, {WS_H}
    s_mul_i32 s42, s42, 36864
    s_lshl_b32 s44, s59, 7
    s_add_u32 s42, s42, s44""")
    if P["dw"]: A(f"s_sleep {P['dw']}")
    wl4(W, 24, 27, 42, 1152, range(4))
    A(f"""v_bfe_u32 v10, v2, 2, 1
    v_lshl_add_u32 v10, v10, 2, v3
    v_lshlrev_b32 v10, 4, v10
    s_lshl_b32 s41, s3, 9
    v_add_u32 v24, s41, v26
    s_waitcnt vmcnt(0)""")
    perms(K, W, 4, 4)
    ST(11)
    if P["dz"]: A(f"s_sleep {P['dz']}")
    ppoll(lambda b: A(f"buffer_load_dwordx4 {R(b,4)}, v10, s[28:31], s43 offen sc1"), [W + 4 * k for k in range(P["nph"])], 1,
          lambda b: A(f"v_perm_b32 v12, v{b+1}, v{b}, s66\nv_perm_b32 v13, v{b+3}, v{b+2}, s66"))
    ST(12)
    for c in range(8): A(f"v_mfma_f32_16x16x16_bf16 {R(V+4*c,4)}, v[12:13], {R(K+2*c,2)}, 0")
    comb(V)
    A(f"s_cmp_eq_u32 s3, 0\ns_cbranch_scc0 Lfin\ns_add_u32 s49, s49, {WS_C-WS_B}")
    gather_pub(18, L_OP, "s49")
    ST(5)
    A("s_branch Lfin")
    A("Ly:")
    wl4(W, 20, 29, 42, 9216, range(n1, 8))
    A(f"""v_lshrrev_b32 v8, 2, v2
    v_mul_u32_u24 v8, {36*BS}, v8
    v_and_b32 v9, 3, v2
    v_lshl_add_u32 v9, v3, 2, v9
    v_lshl_add_u32 v8, v9, 4, v8
    s_mul_i32 s41, s3, {BS}
    v_add_u32 v8, s41, v8
    s_lshl_b32 s41, s3, 7
    v_lshl_add_u32 v9, v9, 3, s41
    v_bfe_u32 v10, v2, 2, 1
    v_lshl_add_u32 v10, v10, 2, v3
    v_lshl_add_u32 v10, v10, 4, s41
    s_lshl_b32 s41, s3, 9
    v_add_u32 v24, s41, v26
    s_lshl_b32 s41, s3, 3
    v_mov_b32 v25, s41
    v_mov_b32 v16, 0x3f803f80
    v_mov_b32 v17, 0x3f803f80
    s_mov_b32 s42, {WS_B + P["bcol"]*BS}
    s_lshl_b32 s43, s70, 8
    s_add_u32 s43, s43, {WS_H}""")
    unpack(V, 18, 2)
    A("s_waitcnt vmcnt(0)")
    ST(8)
    perms(K, W, 8, 4)
    if P["bth"]:
        A(f"""s_cmp_eq_u32 s3, 0
        s_cbranch_scc0 Lg1
        v_mul_u32_u24 v14, {9*BS}, v1
        s_mov_b32 s40, {P['maxpoll']}
        s_mov_b64 exec, 0xffff
        Lg0:
        buffer_load_dwordx4 {R(T,4)}, v14, s[28:31], s42 offen sc1
        s_waitcnt vmcnt(0)""")
        check([T], 12)
        A(f"""s_bcnt1_i32_b64 s41, vcc
        s_cmp_le_u32 s41, {16-P['bth']}
        s_cbranch_scc1 Lg2
        s_mov_b64 exec, vcc
        s_sub_u32 s40, s40, 1
        s_cbranch_scc0 Lg0
        Lg2:
        s_mov_b64 exec, -1
        Lg1:
        s_barrier""")
    if P["db"]: A(f"s_sleep {P['db']}")
    def bread(last):
        ld = lambda b: "\n".join(f"buffer_load_dwordx4 {R(b+4*k,4)}, v8, s[28:31], s{52+k} offen sc1" for k in range(4))
        for k in range(4): A(f"s_mov_b32 s{52+k}, {(WS_C if last else WS_B) + k*9*BS}")
        def fin(b):
            for k in range(0, 8, 2): A(f"v_pk_add_f32 {R(T+k,2)}, {R(b+k,2)}, {R(b+k+8,2)}")
        if last: ppoll(lambda b: A(ld(b)), [K, K + 16, W, W + 16][:P["npc"]], 4, fin)
        else: mpoll([(l, [T + 4 * k]) for k, l in enumerate(ld(T).split("\n"))]); fin(T)
        ST(11 if last else 9)
        for k in (0, 2): A(f"v_pk_add_f32 {R(T+k,2)}, {R(T+k,2)}, {R(T+k+4,2)}")
        red([T + j for j in range(4)], 0, [4, 8])
        A(f"v_cvt_pk_bf16_f32 v12, v{T}, v{T+1}\nv_cvt_pk_bf16_f32 v13, v{T+2}, v{T+3}")
        unpack(T, 12, 2)
        for j in (0, 2): A(f"v_pk_add_f32 {R(T+j,2)}, {R(T+j,2)}, {R(V+j,2)}")
        A(f"v_cvt_pk_bf16_f32 v12, v{T}, v{T+1}\nv_cvt_pk_bf16_f32 v13, v{T+2}, v{T+3}")
    bread(0)
    A(f"v_mfma_f32_16x16x16_bf16 {R(T+8,4)}, v[12:13], v[12:13], 0\nv_mfma_f32_16x16x16_bf16 {R(T+4,4)}, v[12:13], v[16:17], 0")
    unpack(V, 12, 2)
    for j in range(1, 4): dppadd(T + 8, T + 8 + j, f"quad_perm:[{j},{j},{j},{j}]")
    A(f"v_pk_add_f32 {R(T+4,2)}, {R(T+4,2)}, {R(T+6,2)}\nv_add_f32 v22, v{T+4}, v{T+5}\nv_mov_b32 v23, v{T+8}")
    execm("1", "0"); A(f"ds_write_b64 v25, v[22:23] offset:{L_ST}\ns_mov_b64 exec, -1")
    A(BAR)
    for k in range(4): A(f"ds_read_b128 {R(T+8+4*k,4)}, v28 offset:{L_ST+16*k}")
    A(f"ds_read_b64 v[22:23], v28 offset:{L_ST+64}\ns_waitcnt lgkmcnt(0)")
    for st in (8, 4, 2):
        for k in range(0, st, 2): A(f"v_pk_add_f32 {R(T+8+k,2)}, {R(T+8+k,2)}, {R(T+8+k+st,2)}")
    A(f"v_pk_add_f32 v[22:23], v[22:23], {R(T+8,2)}")
    lnscale(22, 23, 21); lnorm(T, 12, 22, 23, V)
    A(f"ds_write_b64 v9, v[12:13] offset:{L_HN}\nds_read_b128 v[12:15], v10 offset:{L_HN}\ns_waitcnt lgkmcnt(0)")
    for c in range(8): A(f"v_mfma_f32_16x16x32_bf16 {R(T+4*c,4)}, v[12:15], {R(K+4*c,4)}, 0")
    comb(T)
    ST(10)
    A("s_cmp_eq_u32 s3, 0\ns_cbranch_scc0 Ly2\nv_mov_b32 v14, v8")
    gather_pub(18, L_OP, "s43", relu=1)
    ST(12)
    A(f"v_mov_b32 v8, v14\nLy2:\ns_lshl_b32 s41, s3, 3\ns_cmp_eq_u32 s41, s70\ns_cbranch_scc0 Lfin\ns_mov_b32 s42, {WS_C}")
    if P["dr"]: A(f"s_sleep {P['dr']}")
    bread(1)
    execm("0x000f000f", "0x000f000f"); A("buffer_store_dwordx2 v[12:13], v9, s[32:35], 0 offen")
    ST(5)
    if P["dbgt"]:
        A("""s_load_dwordx2 s[44:45], s[0:1], 72
        s_memrealtime s[74:75]
        s_mov_b32 s46, 256
        s_mov_b32 s47, 0x20000
        s_waitcnt lgkmcnt(0)
        s_sub_u32 s74, s74, s72
        v_mov_b32 v14, s74
        s_lshl_b32 s41, s3, 2
        buffer_store_dword v14, v28, s[44:47], s41 offen""")
    A("s_cmp_eq_u32 s3, 0\ns_cbranch_scc0 Lfin\nv_mov_b32 v12, s64"); execm("1", "0")
    A("buffer_store_dword v12, v28, s[28:31], 0 offen sc1")
    A("Lfin:\ns_waitcnt vmcnt(0)")
    if P["stamp"]:
        A("s_mov_b64 exec, -1\ns_waitcnt vmcnt(0)"); ST(13)
        A("s_lshl4_add_u32 s41, s2, s3\ns_lshl_b32 s41, s41, 7\ns_add_u32 s41, s41, 0x10000000\nv_lshlrev_b32 v8, 2, v1\nv_mov_b32 v9, 0\ns_waitcnt lgkmcnt(0)")
        for k in range(14): A(f"v_writelane_b32 v9, s{72+2*k}, {k}")
        execm("0xffff", "0"); A("buffer_store_dword v9, v8, s[28:31], s41 offen")
    A("Lend:")
    body = "\n".join(out)
    body = body.replace("s_mov_b64 s[4:5], s[36:37]", "s_mov_b64 s[4:5], s[36:37]\n    s_mov_b32 s13, s41").replace("s41x", "s13")
    if P["stamp"]: body = "\n".join(f"    s_mov_b32 s{72+2*k}, 0" for k in range(1, 14)) + "\n" + body
    body, n = pad(body)
    ref = open("cdna_kernels/" + KN[:-7] + ".s.ref").read()
    head = ref[:ref.index(KN + ":") + len(KN) + 1].replace("grid=(3,1,1) block=(256,1,1) lds=0", f"grid=(256,1,1) block=(576,1,1) lds={L_END}")
    tail = ref[ref.index("s_endpgm"):].replace("next_free_vgpr 256", "next_free_vgpr 160").replace("accum_offset 256", "accum_offset 160")
    return head + "\n" + body + "\n" + tail

if __name__ == "__main__":
    kw = {}
    for a in sys.argv[2:]:
        k, v = a.split("="); kw[k] = eval(v)
    open(sys.argv[1], "w").write(gen(**kw))
```

```python
import sys, os
sys.path.insert(0, os.path.dirname(__file__))
from asmlib import pad
KN = "sequential_preLN__sliding_block_cached__dense_activation_relu__decode_kernel"
WS_Q, WS_A, WS_B, WS_H, WS_C = 0x10000, 0x20000, 0x200000, 0x90000, 0x400000
L_QP, L_Q, L_S, L_OP, L_XP, L_ST, L_HN, L_H1, L_END = 0, 2560, 3072, 5120, 13312, 15616, 15872, 17408, 18560
L_ML = L_S + 1024
LOFF = 0x200000
LOG2E = "0x3fb8aa3b"
DEF = dict(stamp=0, yo=2, yw=2, xw=1, zw=1, qm=0, qw=1, dq=0, da=0, db=0, dr=0, dz=0, dbgt=0, bth=6, b0=1, BS=256, bl2=0, al2=0, bcol=4, nph=3, npc=3, pp=0, dw=0, dsw=16, D2=4, rs=0, maxpoll=20000, touch=1, nk0=2, ym=2, pb=0, n1=2, n2=4, loca=0, locq=0, mask=1, pf=0, nx=1, ybar=1, xo=1, pnt="nt", dend=13, w2f=0, ylate=2, bad=0, D=3, nv0=8, nt="nt", wnt="nt")

def gen(**kw):
    P = dict(DEF); P.update(kw)
    out = []; A = lambda s: out.extend("    " + x.strip() if not x.strip().endswith(":") else x.strip() for x in s.strip().split("\n"))
    BS = P["BS"]
    nt, wnt = P["nt"], P["wnt"]
    def ST(k):
        if P["stamp"]: A(f"s_memrealtime s[{72+2*k}:{73+2*k}]")
    R = lambda b, n: f"v[{b}:{b+n-1}]"
    K, V, W, T = 32, 64, 96, 128
    lab = [0]
    def dppadd(d, s, ctrl, op="add"): A(f"v_{op}_f32_dpp v{d}, v{s}, v{d} {ctrl} row_mask:0xf bank_mask:0xf")
    def swapred(regs, tmp, which, op="add"):
        for n, r in enumerate(regs): A(f"v_mov_b32 v{tmp+n}, v{r}")
        for n, r in enumerate(regs): A(f"v_permlane{which}_swap_b32 v{tmp+n}, v{r}")
        for n, r in enumerate(regs): A(f"v_{op}_f32 v{r}, v{tmp+n}, v{r}")
    def red(regs, tmp, steps, op="add"):
        for s in steps:
            if s in (16, 32): swapred(regs, tmp, s, op)
            else:
                for r in regs: dppadd(r, r, {1: "quad_perm:[1,0,3,2]", 2: "quad_perm:[2,3,0,1]", 4: "row_ror:4", 8: "row_ror:8"}[s], op)
    def tag(b):
        for j in range(4): A(f"v_and_or_b32 v{b+j}, v{b+j}, v4, s{60+j}")
    def untag(b, n=4):
        for j in range(n): A(f"v_and_b32 v{b+j}, v4, v{b+j}")
    def check(gr, t, dst="vcc"):
        rs = [b + j for b in gr for j in range(4)]
        for r in rs: A(f"v_xor_b32 v{r}, s{60+(r&3)}, v{r}")
        acc = []
        for k, part in enumerate((rs[:len(rs)//2], rs[len(rs)//2:]) if len(rs) > 4 else (rs,)):
            A(f"v_or3_b32 v{t+k}, v{part[0]}, v{part[1]}, v{part[2]}"); part = part[3:]
            while len(part) > 1: A(f"v_or3_b32 v{t+k}, v{t+k}, v{part[0]}, v{part[1]}"); part = part[2:]
            acc += part
        if len(rs) > 4: A(f"v_or3_b32 v{t}, v{t}, v{acc[0]}, v{acc[1]}\nv_or_b32 v{t}, v{t}, v{t+1}")
        else: A(f"v_or_b32 v{t}, v{t}, v{acc[0]}")
        A(f"v_cmp_ne_u32_sdwa {dst}, v{t}, v28 src0_sel:BYTE_0 src1_sel:DWORD")
    def ppoll(ld, sets, ng, fin):
        lab[0] += 1; n = lab[0]; m = len(sets)
        A(f"s_mov_b32 s40, {P['maxpoll']}")
        for k, b in enumerate(sets):
            if k and P['pp']: A(f"s_sleep {P['pp']}")
            ld(b)
        A(f"Lp{n}:")
        for k, b in enumerate(sets):
            A(f"s_waitcnt vmcnt({ng*(m-1)})"); check([b + 4 * j for j in range(ng)], 12)
            A(f"s_cbranch_vccz Lq{n}_{k}"); ld(b)
        A(f"s_sub_u32 s40, s40, 1\ns_cbranch_scc0 Lp{n}")
        for k, b in enumerate(sets):
            A(f"Lq{n}_{k}:"); fin(b)
            if k < m - 1: A(f"s_branch Lq{n}")
        A(f"Lq{n}:")
    def mpoll(groups, after=None):
        lab[0] += 1; n = lab[0]; M = lambda k: f"s[{4+2*k}:{5+2*k}]"
        A(f"s_mov_b32 s40, {P['maxpoll']}")
        for ld, gr in groups: A(ld)
        if after: after()
        left = sum(len(gr) for ld, gr in groups)
        for k, (ld, gr) in enumerate(groups):
            left -= len(gr); A(f"s_waitcnt vmcnt({left})"); check(gr, 12 + 2 * (k & 1), M(k))
        A(f"Lp{n}:\ns_or_b64 vcc, {M(0)}, {M(1)}")
        for k in range(2, len(groups)): A(f"s_or_b64 vcc, vcc, {M(k)}")
        A(f"s_cbranch_scc0 Lq{n}\ns_sub_u32 s40, s40, 1\ns_cbranch_scc1 Lq{n}")
        if P["rs"]: A(f"s_sleep {P['rs']}")
        for k, (ld, gr) in enumerate(groups):
            A(f"s_mov_b64 exec, {M(k)}\ns_cbranch_execz Lm{n}_{k}"); A(ld); A(f"Lm{n}_{k}:")
        A("s_waitcnt vmcnt(0)")
        for k, (ld, gr) in enumerate(groups):
            A(f"s_mov_b64 exec, {M(k)}\ns_cbranch_execz Ln{n}_{k}"); check(gr, 12 + 2 * (k & 1), M(k)); A(f"Ln{n}_{k}:")
        A(f"s_mov_b64 exec, -1\ns_branch Lp{n}\nLq{n}:")
    def poll(loads, gr, t, after=None, nafter=0, first=0):
        lab[0] += 1; n = lab[0]
        A(f"s_mov_b32 s40, {P['maxpoll']}")
        A(loads.replace(" sc1", "") if first else loads)
        if after: after()
        A(f"s_waitcnt vmcnt({nafter})")
        A(f"Lp{n}:")
        check(gr, t)
        A(f"s_cbranch_vccz Lq{n}\ns_sub_u32 s40, s40, 1\ns_cbranch_scc1 Lq{n}")
        if P["rs"]: A(f"s_sleep {P['rs']}")
        A("s_mov_b64 exec, vcc")
        A(loads); A(f"s_waitcnt vmcnt(0)\ns_branch Lp{n}\nLq{n}:\ns_mov_b64 exec, -1")
    def perms(dst, src, nld, w):
        for c in range(2 * w):
            for p in range(nld // 2):
                A(f"v_perm_b32 v{dst+c*(nld//2)+p}, v{src+(2*p+1)*w+(c>>1)}, v{src+2*p*w+(c>>1)}, s{65+(c&1)}")
    def wloads(dst, srd, voff, sbase, stride, es):
        for e in es:
            A(f"s_add_u32 s41, s{sbase}, {e*stride}\nbuffer_load_dwordx2 {R(dst+2*e,2)}, v{voff}, s[{srd}:{srd+3}], s41 offen {wnt}")
    def wl4(dst, srd, voff, sbase, stride, es):
        for e in es:
            A(f"s_add_u32 s41, s{sbase}, {e*stride}\nbuffer_load_dwordx4 {R(dst+4*e,4)}, v{voff}, s[{srd}:{srd+3}], s41 offen {wnt}")
    def comb(D):
        for n in range(4): A(f"v_cndmask_b32 v{20+n}, v{D+16+4*n}, v{D+4*n}, s[36:37]")
        execm("0xff0000ff", "0xff0000ff"); A(f"ds_write_b128 v24, v[20:23] offset:{L_OP}\ns_mov_b64 exec, -1"); A(BAR)
    def lnscale(sm, sq, t):
        A(f"""v_mul_f32 v{sm}, 0x3ae38e39, v{sm}
        v_mul_f32 v{sq}, 0x3ae38e39, v{sq}
        v_fma_f32 v{sq}, -v{sm}, v{sm}, v{sq}
        v_max_f32 v{sq}, 0, v{sq}
        v_cvt_pk_bf16_f32 v{t}, v{sm}, v{sq}
        v_lshlrev_b32 v{sm}, 16, v{t}
        v_and_b32 v{sq}, 0xffff0000, v{t}
        v_add_f32 v{sq}, 0x3727c5ac, v{sq}
        v_cvt_pk_bf16_f32 v{sq}, v{sq}, v{sq}
        v_and_b32 v{sq}, 0xffff0000, v{sq}
        v_sqrt_f32 v{sq}, v{sq}
        v_cvt_pk_bf16_f32 v{sq}, v{sq}, v{sq}
        v_and_b32 v{sq}, 0xffff0000, v{sq}
        v_rcp_f32 v{sq}, v{sq}""")
    def lnorm(x, d, sm, sq, src=None):
        for j in (0, 2): A(f"v_pk_add_f32 {R(x+j,2)}, {R((src or x)+j,2)}, {R(sm,2)} op_sel_hi:[1,0] neg_lo:[0,1] neg_hi:[0,1]")
        A(f"v_cvt_pk_bf16_f32 v{d}, v{x}, v{x+1}\nv_cvt_pk_bf16_f32 v{d+1}, v{x+2}, v{x+3}")
        unpack(x, d, 2)
        for j in (0, 2): A(f"v_pk_mul_f32 {R(x+j,2)}, {R(x+j,2)}, {R(sm,2)} op_sel:[0,1] op_sel_hi:[1,1]")
        A(f"v_cvt_pk_bf16_f32 v{d}, v{x}, v{x+1}\nv_cvt_pk_bf16_f32 v{d+1}, v{x+2}, v{x+3}")
    def unpack(d, s, n):
        for j in range(n): A(f"v_and_b32 v{d+2*j+1}, 0xffff0000, v{s+j}\nv_lshlrev_b32 v{d+2*j}, 16, v{s+j}")
    def execm(lo, hi): A(f"s_mov_b32 exec_lo, {lo}\ns_mov_b32 exec_hi, {hi}")
    def gather_pub(n, base, soff, relu=0):
        A("v_lshlrev_b32 v8, 2, v1")
        for k in range(0, n - 1, 2): A(f"ds_read2st64_b32 {R(T+k,2)}, v8 offset0:{base//256+k} offset1:{base//256+k+1}")
        if n & 1: A(f"ds_read_b32 v{T+n-1}, v8 offset:{base+(n-1)*256}")
        A("s_waitcnt lgkmcnt(0)")
        pr = list(range(T, T + n - 1, 2))
        while len(pr) > 1:
            for a in range(0, len(pr) - 1, 2): A(f"v_pk_add_f32 {R(pr[a],2)}, {R(pr[a],2)}, {R(pr[a+1],2)}")
            pr = pr[0::2]
        A(f"v_add_f32 v{T}, v{T}, v{T+1}")
        if n & 1: A(f"v_add_f32 v{T}, v{T}, v{T+n-1}")
        if relu: A(f"v_max_f32 v{T}, 0, v{T}\nv_cvt_pk_bf16_f32 v{T}, v{T}, v{T}")
        for j in range(1, 4): A(f"v_mov_b32_dpp v{T+j}, v{T} quad_perm:[{j},{j},{j},{j}] row_mask:0xf bank_mask:0xf")
        tag(T); execm("0x11111111", "0x11111111")
        A(f"buffer_store_dwordx4 {R(T,4)}, v8, s[28:31], {soff} offen sc1\ns_mov_b64 exec, -1")
    def tree(rs):
        while len(rs) > 1:
            nx = []
            for a in range(0, len(rs) - 1, 2): A(f"v_add_f32 v{rs[a]}, v{rs[a]}, v{rs[a+1]}"); nx.append(rs[a])
            if len(rs) & 1: nx.append(rs[-1])
            rs = nx
    def d2lds(D, vaddr):
        for c in range(4): A(f"v_mov_b32 v{20+c}, v{D+4*c}")
        execm("0xffff", "0"); A(f"ds_write_b128 v{vaddr}, v[20:23]\ns_mov_b64 exec, -1")
    BAR = "s_waitcnt lgkmcnt(0)\ns_barrier"

    ST(0)
    if P["dbgt"]: A("s_memrealtime s[72:73]")
    A("""s_cmp_ge_u32 s2, 256
    s_cbranch_scc1 Lend
    s_load_dwordx16 s[36:51], s[0:1], 0
    s_load_dwordx2 s[32:33], s[0:1], 64
    s_load_dwordx2 s[28:29], s[0:1], 80
    v_lshrrev_b32 v5, 6, v0
    v_and_b32 v1, 63, v0
    v_readfirstlane_b32 s3, v5
    v_and_b32 v2, 15, v0
    v_lshrrev_b32 v3, 4, v1
    v_mov_b32 v4, 0xffffff00
    s_and_b32 s56, s2, 7
    s_lshr_b32 s57, s2, 3
    s_and_b32 s58, s57, 1
    s_lshl1_add_u32 s58, s56, s58
    s_lshr_b32 s59, s57, 1
    s_mov_b32 s65, 0x05040100
    s_mov_b32 s66, 0x07060302
    s_mov_b32 s67, 0x0c0c0400
    s_mov_b32 s68, 0x04000c0c
    s_mov_b32 s6, 1152
    s_mov_b32 s7, 0x20000
    s_mov_b32 s10, 65536
    s_mov_b32 s11, 0x20000
    s_mov_b32 s14, 65536
    s_mov_b32 s15, 0x20000
    s_mov_b32 s18, 4718592
    s_mov_b32 s19, 0x20000
    s_mov_b32 s23, 0x20000
    s_mov_b32 s26, 5308416
    s_mov_b32 s27, 0x20000
    s_mov_b32 s30, 0x40000000
    s_mov_b32 s31, 0x20000
    s_mov_b32 s34, 1152
    s_mov_b32 s35, 0x20000
    s_lshl_b32 s52, s58, 24
    s_add_u32 s53, s59, 240
    s_lshl_b32 s53, s53, 16
    s_add_u32 s52, s52, s53
    s_lshr_b32 s53, s59, 2
    s_mul_i32 s53, s53, 9
    s_add_u32 s53, s53, s3
    s_lshl_b32 s54, s53, 17
    s_lshl_b32 s53, s53, 5
    s_lshl_b32 s55, s58, 2
    s_and_b32 s69, s59, 3
    s_add_u32 s55, s55, s69
    s_lshl_b32 s55, s55, 7
    s_add_u32 s54, s54, s55
    v_lshlrev_b32 v7, 4, v1
    v_lshlrev_b32 v24, 3, v3
    v_and_b32 v25, 3, v0
    v_lshl_add_u32 v25, v3, 2, v25
    v_lshl_add_u32 v25, v5, 4, v25
    v_lshlrev_b32 v31, 3, v25
    v_lshlrev_b32 v26, 3, v2
    v_lshl_add_u32 v27, v3, 15, v26
    v_mov_b32 v28, 0
    s_mov_b32 s69, 0
    s_cmp_lt_u32 s57, 18
    s_cselect_b32 s69, 1, s69
    s_sub_u32 s70, s57, 18
    s_cmp_lt_u32 s70, 9
    s_cselect_b32 s69, 2, s69
    s_mul_i32 s71, s56, 9
    s_add_u32 s70, s70, s71
    s_waitcnt lgkmcnt(0)
    s_mov_b64 s[4:5], s[36:37]
    s_mov_b64 s[16:17], s[42:43]
    buffer_load_dword v6, v28, s[28:31], 0 offen sc1
    buffer_load_dwordx4 v[8:11], v7, s[4:7], 0 offen
    buffer_load_dwordx4 v[12:15], v7, s[4:7], 0 offen offset:1024
    buffer_load_dwordx2 v[16:17], v24, s[4:7], s53 offen
    buffer_load_dwordx2 v[18:19], v31, s[4:7], 0 offen""")
    wloads(T, 16, 27, 54, 8192, range(4))
    A("""s_add_u32 s8, s38, s52
    s_addc_u32 s9, s39, 0
    s_add_u32 s12, s40, s52
    s_addc_u32 s13, s41x, 0
    s_mov_b64 s[24:25], s[50:51]
    s_mov_b64 s[20:21], s[48:49]
    s_mov_b32 s22, 5308416
    s_cmp_eq_u32 s69, 1
    s_cbranch_scc0 Lnx
    s_mov_b64 s[20:21], s[44:45]
    s_mov_b32 s22, 4718592
    Lnx:
    v_lshrrev_b32 v20, 3, v2
    v_lshl_add_u32 v20, v20, 2, v3
    v_and_b32 v21, 7, v2
    v_lshlrev_b32 v21, 4, v21
    v_mul_u32_u24 v29, 73728, v20
    v_add_u32 v29, v29, v21
    v_mul_u32_u24 v27, 4608, v20
    v_add_u32 v27, v27, v21
    v_lshrrev_b32 v20, 1, v3
    v_lshlrev_b32 v26, 1, v21
    v_lshl_add_u32 v26, v20, 4, v26
    v_lshrrev_b32 v20, 3, v2
    v_lshl_add_u32 v26, v20, 8, v26
    v_lshl_add_u32 v20, v20, 4, v3
    v_mul_u32_u24 v30, 1152, v20
    v_add_u32 v30, v30, v21
    s_mov_b32 s36, -1
    s_mov_b32 s37, 0
    s_lshl4_add_u32 s55, s58, s59
    s_mul_i32 s51, s55, 1152
    s_add_u32 s51, s51, %d
    s_lshl_b32 s55, s55, 8
    s_add_u32 s55, s55, %d
    %s
    s_cmp_eq_u32 s3, 0
    s_cbranch_scc1 Lhelp""" % (WS_A, WS_Q, "s_barrier" if P["b0"] else "s_nop 0"))
    def qphase(nx):
        A(f"s_waitcnt vmcnt({4+nx})")
        ST(1)
        A("v_mov_b32 v20, 0x3f803f80\nv_dot2_f32_bf16 v21, v8, v20, 0\nv_dot2_f32_bf16 v22, v8, v8, 0\nv_dot2_f32_bf16 v23, v12, v20, 0\nv_dot2_f32_bf16 v24, v12, v12, 0")
        for j in range(1, 4):
            A(f"v_dot2_f32_bf16 v21, v{8+j}, v20, v21\nv_dot2_f32_bf16 v22, v{8+j}, v{8+j}, v22\nv_dot2_f32_bf16 v23, v{12+j}, v20, v23\nv_dot2_f32_bf16 v24, v{12+j}, v{12+j}, v24")
        A("v_readfirstlane_b32 s64, v6\nv_add_f32 v23, v21, v23\nv_add_f32 v21, v22, v24\nv_mov_b32 v22, v23\nv_mov_b32 v23, v21")
        red([22, 23], 20, [1, 2, 4, 8, 16, 32])
        A("s_mul_i32 s64, s64, 0x9E3779B1\ns_add_u32 s64, s64, 0x7F4A7C15\ns_and_b32 s60, s64, 0xff\ns_bfe_u32 s61, s64, 0x80008\ns_bfe_u32 s62, s64, 0x80010\ns_lshr_b32 s63, s64, 24")
        lnscale(22, 23, 21)
        unpack(8, 16, 2); lnorm(8, 16, 22, 23)
        A(f"s_lshl_b32 s41, s3, 8\nv_lshl_add_u32 v24, v2, 4, s41\ns_waitcnt vmcnt({nx})")
        ST(2)
        perms(T + 8, T, 4, 2)
        for c in range(4): A(f"v_mfma_f32_16x16x16_bf16 {R(T+16+4*c,4)}, v[16:17], {R(T+8+2*c,2)}, 0")
        d2lds(T + 16, 24)
        A(BAR)
    def ysoff():
        A("""s_mul_i32 s42, s3, 589824
        s_lshl_b32 s43, s70, 7
        s_add_u32 s42, s42, s43
        s_mul_i32 s43, s70, 73728
        s_lshl_b32 s44, s3, 7
        s_add_u32 s43, s43, s44""")
    n1 = P["n1"]
    def w1a(): wl4(W, 20, 29, 42, 9216, range(n1))
    A("""s_sub_u32 s50, s3, 1
    s_lshl_b32 s41, s50, 13
    v_lshrrev_b32 v24, 2, v2
    v_lshlrev_b32 v24, 11, v24
    v_lshl_add_u32 v24, v3, 6, v24
    v_and_b32 v25, 3, v2
    v_lshl_add_u32 v24, v25, 4, v24""")
    nk0 = P["nk0"]
    A("v_mov_b32 v5, v24")
    for n in range(nk0): A(f"buffer_load_dwordx4 {R(K+4*n,4)}, v5, s[8:11], s41 offen offset:{n*256} {nt}")
    qphase(nk0)
    A("v_lshlrev_b32 v24, 11, v3\nv_lshl_add_u32 v24, v2, 4, v24")
    if P["pb"]: A("s_barrier")
    def kv(lo, hi):
        for n in range(lo, hi):
            D = P["D"] if n < P["dsw"] else P["D2"]
            if D and n >= D and n < P["dend"]: A(f"s_waitcnt vmcnt({D-1})")
            A(f"buffer_load_dwordx4 {R(K+4*n,4)}, v{5 if n < 8 else 24}, s[{8 if n < 8 else 12}:{11 if n < 8 else 15}], s45 offen offset:{(n&7)*256} {nt}")
    nsc = 8 + P["nv0"]
    A("s_lshl_b32 s45, s50, 13")
    kv(nk0, nsc)
    A(f"""v_bfe_u32 v8, v2, 2, 1
    v_lshlrev_b32 v31, 8, v8
    v_lshl_add_u32 v31, v3, 6, v31
    v_lshl_add_u32 v31, v25, 4, v31
    s_lshl_b32 s41, s50, 7
    v_lshlrev_b32 v9, 6, v8
    v_lshl_add_u32 v9, v3, 4, v9
    v_add_u32 v9, s41, v9
    v_and_b32 v10, 1, v3
    v_lshlrev_b32 v8, 6, v10
    v_lshrrev_b32 v12, 2, v2
    v_lshl_add_u32 v11, v12, 4, v8
    v_lshrrev_b32 v12, 1, v3
    v_lshl_add_u32 v11, v12, 3, v11
    v_add_u32 v11, s41, v11
    v_lshlrev_b32 v10, 9, v10
    v_lshl_add_u32 v10, v2, 5, v10
    v_lshl_add_u32 v10, v12, 4, v10
    s_lshl_b32 s41, s50, 10
    v_add_u32 v10, s41, v10
    s_lshl_b32 s41, s50, 3
    v_add_u32 v6, s41, v8
    s_barrier
    ds_read_b128 v[20:23], v31 offset:{L_Q}
    s_waitcnt vmcnt({P['nv0']}) lgkmcnt(0)""")
    ST(4)
    for n in range(8): A(f"v_mfma_f32_16x16x32_bf16 {R(T+4*n,4)}, v[20:23], {R(K+4*n,4)}, 0")
    for j in range(1, 4):
        for n in range(8): dppadd(T + 4 * n, T + 4 * n + j, f"quad_perm:[{j},{j},{j},{j}]")
    for n in range(4): A(f"v_cndmask_b32 v{12+n}, v{T+16+4*n}, v{T+4*n}, s[36:37]")
    A("v_cvt_pk_bf16_f32 v16, v12, v13\nv_cvt_pk_bf16_f32 v17, v14, v15"); unpack(12, 16, 2)
    for n in range(4): A(f"v_mul_f32 v{12+n}, 0x3db504f3, v{12+n}")
    A("v_cvt_pk_bf16_f32 v16, v12, v13\nv_cvt_pk_bf16_f32 v17, v14, v15"); unpack(12, 16, 2)
    A("v_max3_f32 v16, v12, v13, v14\nv_max_f32 v16, v16, v15")
    red([16], 20, [4, 8, 32], "max")
    for n in range(4): A(f"v_sub_f32 v{12+n}, v{12+n}, v16")
    for n in range(4): A(f"v_mul_f32 v{12+n}, {LOG2E}, v{12+n}")
    for n in range(4): A(f"v_exp_f32 v{12+n}, v{12+n}")
    A("v_cvt_pk_bf16_f32 v20, v12, v13\nv_cvt_pk_bf16_f32 v21, v14, v15\nv_add_f32 v17, v12, v13\nv_add_f32 v14, v14, v15\nv_add_f32 v17, v17, v14")
    execm("0x11111111", "0x11111111"); A(f"ds_write_b64 v11, v[20:21] offset:{L_S}\ns_mov_b64 exec, -1\nds_read_b128 v[20:23], v9 offset:{L_S}")
    red([17], 12, [4, 8, 32])
    execm("0x00010001", "0"); A(f"ds_write_b64 v6, v[16:17] offset:{L_ML}\ns_mov_b64 exec, -1\nds_read_b32 v16, v6 offset:{L_ML}")
    kv(nsc, 16)
    ST(3)
    A(BAR)
    for k in range(4): A(f"ds_read_b128 {R(T+4*k,4)}, v8 offset:{L_ML+16*k}")
    A("s_cmp_eq_u32 s69, 1\ns_cbranch_scc1 Lax\ns_cmp_eq_u32 s69, 2\ns_cbranch_scc1 Lay")
    def max8():
        A(f"v_max3_f32 v12, v{T}, v{T+2}, v{T+4}\nv_max3_f32 v13, v{T+6}, v{T+8}, v{T+10}\nv_max3_f32 v12, v12, v{T+12}, v{T+14}\nv_max_f32 v12, v12, v13")
    def pv(nw):
        A("s_waitcnt lgkmcnt(0)")
        max8()
        A(f"v_sub_f32 v16, v16, v12\nv_mul_f32 v16, {LOG2E}, v16\nv_exp_f32 v16, v16")
        for p in range(4):
            if p >= 2: A(f"s_waitcnt vmcnt({nw+6-2*p})")
            elif p == 0: A(f"s_waitcnt vmcnt({nw+4})")
            if p == 3: ST(5)
            for c in range(8): A(f"v_perm_b32 v{K+c*4+p}, v{V+(2*p+1)*4+(c>>1)}, v{V+2*p*4+(c>>1)}, s{65+(c&1)}")
        for c in range(8): A(f"v_mfma_f32_16x16x32_bf16 {R(V+4*c,4)}, v[20:23], {R(K+4*c,4)}, 0")
        for n in range(4): A(f"v_cndmask_b32 v{12+n}, v{V+16+4*n}, v{V+4*n}, s[36:37]")
        for n in range(4): A(f"v_mul_f32 v{12+n}, v{12+n}, v16")
        A(f"ds_write_b128 v10, v[12:15] offset:{L_OP}")
        A(BAR)
    pv(0)
    A("s_branch Lfin")
    A("Lay:"); ysoff(); w1a(); pv(n1)
    if P["ylate"] == 2: A("s_barrier")
    A("s_branch Ly")
    A("""Lax:
    s_lshl_b32 s42, s58, 3
    s_add_u32 s42, s42, s50
    s_mul_i32 s42, s42, 36864
    s_lshl_b32 s43, s59, 7
    s_add_u32 s42, s42, s43""")
    nx = P["nx"]; wl4(W, 20, 30, 42, 4608, range(nx)); pv(nx)
    if nx < 4: A("s_barrier"); wl4(W, 20, 30, 42, 4608, range(nx, 4))
    ST(6)
    A(f"""s_mul_i32 s42, s58, 18432
    s_add_u32 s42, s42, {WS_A+1024}
    s_add_u32 s47, s42, 9216
    s_lshl_b32 s43, s50, 7
    s_add_u32 s43, s43, s42
    s_sub_u32 s43, s43, 1024
    s_add_u32 s48, s43, 9216
    v_lshrrev_b32 v8, 3, v1
    v_mul_u32_u24 v8, 1152, v8
    v_and_b32 v9, 7, v1
    v_lshl_add_u32 v9, v9, 4, v8
    s_lshl_b32 s41, s50, 9
    v_add_u32 v24, s41, v26""")
    def wop(n): A(f"s_waitcnt vmcnt({n})"); perms(K, W, 4, 4); ST(7)
    if not P["xo"]: wop(0)
    if P["da"]: A(f"s_sleep {P['da']}")
    if P["xw"] < 4: A(f"s_waitcnt vmcnt({P['xw']})")
    ld = "\n".join(f"buffer_load_dwordx4 {R(T+4*k,4)}, v9, s[28:31], s{so} offen sc1" for k, so in enumerate((43, 48, 42, 47)))
    l = ld.split("\n")
    mpoll([(l[0] + "\n" + l[2], [T, T+8]), (l[1] + "\n" + l[3], [T+4, T+12])], after=(lambda: wop(4)) if P["xo"] else None)
    ST(8)

    A(f"s_cmp_lt_u32 s50, 4\ns_cbranch_scc1 Lx0\nv_mov_b32 v{T+8}, v{T+10}\nv_mov_b32 v{T+9}, v{T+11}\nv_mov_b32 v{T+12}, v{T+14}\nv_mov_b32 v{T+13}, v{T+15}\nLx0:")
    A(f"v_max_f32 v12, v{T+8}, v{T+12}")
    red([12], 13, [8, 16, 32], "max")
    A(f"v_sub_f32 v13, v{T+12}, v12\nv_sub_f32 v12, v{T+8}, v12\nv_mul_f32 v13, {LOG2E}, v13\nv_mul_f32 v12, {LOG2E}, v12\nv_exp_f32 v13, v13\nv_exp_f32 v12, v12")
    A(f"v_mul_f32 v{T+9}, v{T+9}, v12\nv_fmac_f32 v{T+9}, v{T+13}, v13")
    for e in range(4): A(f"v_mul_f32 v{T+e}, v{T+e}, v12")
    for e in range(4): A(f"v_fmac_f32 v{T+e}, v{T+4+e}, v13")
    red([T + 9] + [T + e for e in range(4)], 0, [8])
    A(f"""v_mov_b32 v13, v{T+9}
    v_permlane16_swap_b32 v{T}, v{T+1}
    v_permlane16_swap_b32 v{T+2}, v{T+3}
    v_permlane16_swap_b32 v13, v{T+9}
    v_add_f32 v{T}, v{T}, v{T+1}
    v_add_f32 v{T+2}, v{T+2}, v{T+3}
    v_add_f32 v13, v13, v{T+9}
    v_mov_b32 v12, v13
    v_permlane32_swap_b32 v{T}, v{T+2}
    v_permlane32_swap_b32 v12, v13
    v_add_f32 v12, v12, v13
    v_rcp_f32 v12, v12
    v_add_f32 v{T}, v{T}, v{T+2}
    v_mul_f32 v{T}, v{T}, v12""")
    for j in range(4): A(f"v_mov_b32_dpp v{T+4+j}, v{T} quad_perm:[{j},{j},{j},{j}] row_mask:0xf bank_mask:0xf")
    A(f"v_cvt_pk_bf16_f32 v12, v{T+4}, v{T+5}\nv_cvt_pk_bf16_f32 v13, v{T+6}, v{T+7}")
    for c in range(8): A(f"v_mfma_f32_16x16x16_bf16 {R(V+4*c,4)}, v[12:13], {R(K+2*c,2)}, 0")
    comb(V); A("s_barrier\ns_branch Lz")
    A("Lhelp:\ns_setprio 3")
    ntouch = 0
    if P["touch"]:
        ntouch = 4
        A(f"""s_mul_i32 s42, s58, 9
        s_add_u32 s42, s42, s59
        s_mul_i32 s42, s42, {BS}
        s_add_u32 s42, s42, {WS_B}
        s_add_u32 s43, s42, {WS_C-WS_B}
        s_lshl_b32 s44, s70, 8
        s_add_u32 s44, s44, {WS_H}
        s_cmp_eq_u32 s69, 2
        s_cselect_b32 s42, s44, s42
        v_lshlrev_b32 v24, 7, v1
        v_mov_b32 v25, 0x80000000
        v_cmp_gt_u32 vcc, 2, v1
        v_cndmask_b32 v20, v25, v24, vcc
        v_cmp_gt_u32 vcc, 9, v1
        v_cndmask_b32 v21, v25, v24, vcc
        buffer_load_dword v32, v20, s[28:31], s55 offen sc1
        buffer_load_dword v33, v21, s[28:31], s51 offen sc1
        buffer_load_dword v34, v20, s[28:31], s42 offen sc1
        buffer_load_dword v35, v20, s[28:31], s43 offen sc1""")
    qphase(ntouch)
    gather_pub(9, L_QP, "s55")
    ST(3)
    if P["pb"]: A("s_barrier")
    A(f"s_lshl_b32 s42, s58, 12\ns_add_u32 s42, s42, {WS_Q}")
    if P["dq"]: A(f"s_sleep {P['dq']}")
    ql = [f"buffer_load_dwordx4 {R(T+4*k,4)}, v7, s[28:31], s42 offen offset:{k*1024} sc1" for k in range(4)]
    if P["qw"]: A("s_waitcnt vmcnt(0)")
    if P["qm"]: mpoll([(ql[k], [T + 4 * k]) for k in range(4)])
    else: poll("\n".join(ql), [T + 4 * k for k in range(4)], 12)
    ST(4)
    for j in range(4): tree([T + j + 4 * k for k in range(4)])
    A(f"v_cvt_pk_bf16_f32 v12, v{T}, v{T+1}\nv_cvt_pk_bf16_f32 v13, v{T+2}, v{T+3}\nv_lshlrev_b32 v8, 3, v1\nds_write_b64 v8, v[12:13] offset:{L_Q}")
    A(BAR)
    A("v_lshrrev_b32 v8, 5, v1\nv_lshlrev_b32 v8, 6, v8\ns_barrier")
    for k in range(4): A(f"ds_read_b128 {R(T+4*k,4)}, v8 offset:{L_ML+16*k}")
    A("s_cmp_eq_u32 s69, 2\ns_cbranch_scc0 Lh1"); ysoff(); w1a(); A("Lh1:\ns_waitcnt lgkmcnt(0)")
    max8()
    for e in range(8): A(f"v_sub_f32 v{T+2*e}, v{T+2*e}, v12")
    for e in range(8): A(f"v_mul_f32 v{T+2*e}, {LOG2E}, v{T+2*e}")
    for e in range(8): A(f"v_exp_f32 v{T+2*e}, v{T+2*e}")
    for e in range(8): A(f"v_mul_f32 v{T+2*e}, v{T+2*e}, v{T+2*e+1}")
    tree([T + 2 * e for e in range(8)])
    A(f"v_mov_b32 v14, v12\nv_mov_b32 v13, v{T}\nv_mov_b32 v15, v{T}\nv_permlane32_swap_b32 v12, v14\nv_permlane32_swap_b32 v13, v15")
    tag(12)
    A("s_barrier")
    ST(6)
    for k in range(8): A(f"ds_read_b128 {R(T+4*k,4)}, v7 offset:{L_OP+k*1024}")
    execm("0xff", "0")
    A("buffer_store_dwordx4 v[12:15], v7, s[28:31], s51 offen offset:1024 sc1\ns_mov_b64 exec, -1\ns_waitcnt lgkmcnt(0)")
    for st in (16, 8, 4):
        for k in range(0, st, 2): A(f"v_pk_add_f32 {R(T+k,2)}, {R(T+k,2)}, {R(T+k+st,2)}")
    tag(T)
    A(f"buffer_store_dwordx4 {R(T,4)}, v7, s[28:31], s51 offen sc1")
    ST(7)
    if P["ylate"] == 2: A("s_cmp_eq_u32 s69, 2\ns_cbranch_scc0 Lh2\ns_barrier\nLh2:")
    A("s_cmp_eq_u32 s69, 2\ns_cbranch_scc1 Ly\ns_cmp_eq_u32 s69, 1\ns_cbranch_scc0 Lfin")
    A(f"s_mul_i32 s42, s58, 9\ns_add_u32 s42, s42, s59\ns_mul_i32 s42, s42, {BS}\ns_add_u32 s49, s42, {WS_B}\ns_barrier")
    if nx < 4: A("s_barrier")
    ST(9)
    gather_pub(16, L_OP, "s49")
    ST(10)
    if P["zw"]: A("s_waitcnt vmcnt(0)")
    A("s_barrier")
    A(f"""Lz:
    s_mul_i32 s42, s58, 9
    s_add_u32 s42, s42, s3
    s_lshl_b32 s43, s42, 7
    s_add_u32 s43, s43, {WS_H}
    s_mul_i32 s42, s42, 36864
    s_lshl_b32 s44, s59, 7
    s_add_u32 s42, s42, s44""")
    if P["dw"]: A(f"s_sleep {P['dw']}")
    wl4(W, 24, 27, 42, 1152, range(4))
    A(f"""v_bfe_u32 v10, v2, 2, 1
    v_lshl_add_u32 v10, v10, 2, v3
    v_lshlrev_b32 v10, 4, v10
    s_lshl_b32 s41, s3, 9
    v_add_u32 v24, s41, v26
    s_waitcnt vmcnt(0)""")
    perms(K, W, 4, 4)
    ST(11)
    if P["dz"]: A(f"s_sleep {P['dz']}")
    ppoll(lambda b: A(f"buffer_load_dwordx4 {R(b,4)}, v10, s[28:31], s43 offen sc1"), [W + 4 * k for k in range(P["nph"])], 1,
          lambda b: A(f"v_perm_b32 v12, v{b+1}, v{b}, s66\nv_perm_b32 v13, v{b+3}, v{b+2}, s66"))
    ST(12)
    for c in range(8): A(f"v_mfma_f32_16x16x16_bf16 {R(V+4*c,4)}, v[12:13], {R(K+2*c,2)}, 0")
    comb(V)
    A(f"s_cmp_eq_u32 s3, 0\ns_cbranch_scc0 Lfin\ns_add_u32 s49, s49, {WS_C-WS_B}")
    gather_pub(18, L_OP, "s49")
    ST(5)
    A("s_branch Lfin")
    A("Ly:")
    wl4(W, 20, 29, 42, 9216, range(n1, 8))
    A(f"""v_lshrrev_b32 v8, 2, v2
    v_mul_u32_u24 v8, {36*BS}, v8
    v_and_b32 v9, 3, v2
    v_lshl_add_u32 v9, v3, 2, v9
    v_lshl_add_u32 v8, v9, 4, v8
    s_mul_i32 s41, s3, {BS}
    v_add_u32 v8, s41, v8
    s_lshl_b32 s41, s3, 7
    v_lshl_add_u32 v9, v9, 3, s41
    v_bfe_u32 v10, v2, 2, 1
    v_lshl_add_u32 v10, v10, 2, v3
    v_lshl_add_u32 v10, v10, 4, s41
    s_lshl_b32 s41, s3, 9
    v_add_u32 v24, s41, v26
    s_lshl_b32 s41, s3, 3
    v_mov_b32 v25, s41
    v_mov_b32 v16, 0x3f803f80
    v_mov_b32 v17, 0x3f803f80
    s_mov_b32 s42, {WS_B + P["bcol"]*BS}
    s_lshl_b32 s43, s70, 8
    s_add_u32 s43, s43, {WS_H}""")
    unpack(V, 18, 2)
    yo = P["yo"]
    if yo != 1: A(f"s_waitcnt vmcnt({0 if yo == 0 else P['yw']})")
    if not yo: ST(8); perms(K, W, 8, 4)
    if P["bth"]:
        A(f"""s_cmp_eq_u32 s3, 0
        s_cbranch_scc0 Lg1
        v_mul_u32_u24 v14, {9*BS}, v1
        s_mov_b32 s40, {P['maxpoll']}
        s_mov_b64 exec, 0xffff
        Lg0:
        buffer_load_dwordx4 {R(T,4)}, v14, s[28:31], s42 offen sc1
        s_waitcnt vmcnt(0)""")
        check([T], 12)
        A(f"""s_bcnt1_i32_b64 s41, vcc
        s_cmp_le_u32 s41, {16-P['bth']}
        s_cbranch_scc1 Lg2
        s_mov_b64 exec, vcc
        s_sub_u32 s40, s40, 1
        s_cbranch_scc0 Lg0
        Lg2:
        s_mov_b64 exec, -1
        Lg1:
        s_barrier""")
    if P["db"]: A(f"s_sleep {P['db']}")
    def bread(last):
        ld = lambda b: "\n".join(f"buffer_load_dwordx4 {R(b+4*k,4)}, v8, s[28:31], s{52+k} offen sc1" for k in range(4))
        for k in range(4): A(f"s_mov_b32 s{52+k}, {(WS_C if last else WS_B) + k*9*BS}")
        def fin(b):
            for k in range(0, 8, 2): A(f"v_pk_add_f32 {R(T+k,2)}, {R(b+k,2)}, {R(b+k+8,2)}")
        if last: ppoll(lambda b: A(ld(b)), [K, K + 16, W, W + 16][:P["npc"]], 4, fin)
        else:
            def w1p(): A("s_waitcnt vmcnt(4)"); ST(8); perms(K, W, 8, 4)
            mpoll([(l, [T + 4 * k]) for k, l in enumerate(ld(T).split("\n"))], after=w1p if yo else None); fin(T)
        ST(11 if last else 9)
        for k in (0, 2): A(f"v_pk_add_f32 {R(T+k,2)}, {R(T+k,2)}, {R(T+k+4,2)}")
        red([T + j for j in range(4)], 0, [4, 8])
        A(f"v_cvt_pk_bf16_f32 v12, v{T}, v{T+1}\nv_cvt_pk_bf16_f32 v13, v{T+2}, v{T+3}")
        unpack(T, 12, 2)
        for j in (0, 2): A(f"v_pk_add_f32 {R(T+j,2)}, {R(T+j,2)}, {R(V+j,2)}")
        A(f"v_cvt_pk_bf16_f32 v12, v{T}, v{T+1}\nv_cvt_pk_bf16_f32 v13, v{T+2}, v{T+3}")
    bread(0)
    A(f"v_mfma_f32_16x16x16_bf16 {R(T+8,4)}, v[12:13], v[12:13], 0\nv_mfma_f32_16x16x16_bf16 {R(T+4,4)}, v[12:13], v[16:17], 0")
    unpack(V, 12, 2)
    for j in range(1, 4): dppadd(T + 8, T + 8 + j, f"quad_perm:[{j},{j},{j},{j}]")
    A(f"v_pk_add_f32 {R(T+4,2)}, {R(T+4,2)}, {R(T+6,2)}\nv_add_f32 v22, v{T+4}, v{T+5}\nv_mov_b32 v23, v{T+8}")
    execm("1", "0"); A(f"ds_write_b64 v25, v[22:23] offset:{L_ST}\ns_mov_b64 exec, -1")
    A(BAR)
    for k in range(4): A(f"ds_read_b128 {R(T+8+4*k,4)}, v28 offset:{L_ST+16*k}")
    A(f"ds_read_b64 v[22:23], v28 offset:{L_ST+64}\ns_waitcnt lgkmcnt(0)")
    for st in (8, 4, 2):
        for k in range(0, st, 2): A(f"v_pk_add_f32 {R(T+8+k,2)}, {R(T+8+k,2)}, {R(T+8+k+st,2)}")
    A(f"v_pk_add_f32 v[22:23], v[22:23], {R(T+8,2)}")
    lnscale(22, 23, 21); lnorm(T, 12, 22, 23, V)
    A(f"ds_write_b64 v9, v[12:13] offset:{L_HN}\nds_read_b128 v[12:15], v10 offset:{L_HN}\ns_waitcnt lgkmcnt(0)")
    for c in range(8): A(f"v_mfma_f32_16x16x32_bf16 {R(T+4*c,4)}, v[12:15], {R(K+4*c,4)}, 0")
    comb(T)
    ST(10)
    A("s_cmp_eq_u32 s3, 0\ns_cbranch_scc0 Ly2\nv_mov_b32 v14, v8")
    gather_pub(18, L_OP, "s43", relu=1)
    ST(12)
    A(f"v_mov_b32 v8, v14\nLy2:\ns_lshl_b32 s41, s3, 3\ns_cmp_eq_u32 s41, s70\ns_cbranch_scc0 Lfin\ns_mov_b32 s42, {WS_C}")
    if P["dr"]: A(f"s_sleep {P['dr']}")
    bread(1)
    execm("0x000f000f", "0x000f000f"); A("buffer_store_dwordx2 v[12:13], v9, s[32:35], 0 offen")
    ST(5)
    if P["dbgt"]:
        A("""s_load_dwordx2 s[44:45], s[0:1], 72
        s_memrealtime s[74:75]
        s_mov_b32 s46, 256
        s_mov_b32 s47, 0x20000
        s_waitcnt lgkmcnt(0)
        s_sub_u32 s74, s74, s72
        v_mov_b32 v14, s74
        s_lshl_b32 s41, s3, 2
        buffer_store_dword v14, v28, s[44:47], s41 offen""")
    A("s_cmp_eq_u32 s3, 0\ns_cbranch_scc0 Lfin\nv_mov_b32 v12, s64"); execm("1", "0")
    A("buffer_store_dword v12, v28, s[28:31], 0 offen sc1")
    A("Lfin:\ns_waitcnt vmcnt(0)")
    if P["stamp"]:
        A("s_mov_b64 exec, -1\ns_waitcnt vmcnt(0)"); ST(13)
        A("s_lshl4_add_u32 s41, s2, s3\ns_lshl_b32 s41, s41, 7\ns_add_u32 s41, s41, 0x10000000\nv_lshlrev_b32 v8, 2, v1\nv_mov_b32 v9, 0\ns_waitcnt lgkmcnt(0)")
        for k in range(14): A(f"v_writelane_b32 v9, s{72+2*k}, {k}")
        execm("0xffff", "0"); A("buffer_store_dword v9, v8, s[28:31], s41 offen")
    A("Lend:")
    body = "\n".join(out)
    body = body.replace("s_mov_b64 s[4:5], s[36:37]", "s_mov_b64 s[4:5], s[36:37]\n    s_mov_b32 s13, s41").replace("s41x", "s13")
    if P["stamp"]: body = "\n".join(f"    s_mov_b32 s{72+2*k}, 0" for k in range(1, 14)) + "\n" + body
    body, n = pad(body)
    ref = open("cdna_kernels/" + KN[:-7] + ".s.ref").read()
    head = ref[:ref.index(KN + ":") + len(KN) + 1].replace("grid=(3,1,1) block=(256,1,1) lds=0", f"grid=(256,1,1) block=(576,1,1) lds={L_END}")
    tail = ref[ref.index("s_endpgm"):].replace("next_free_vgpr 256", "next_free_vgpr 160").replace("accum_offset 256", "accum_offset 160")
    return head + "\n" + body + "\n" + tail

if __name__ == "__main__":
    kw = {}
    for a in sys.argv[2:]:
        k, v = a.split("="); kw[k] = eval(v)
    open(sys.argv[1], "w").write(gen(**kw))
```
